```python
import torch

def _softmax(x, axis=-1):
    return torch.softmax(x, dim=axis)
def _gelu(x):
    return torch.nn.functional.gelu(x, approximate="tanh")
def _silu(x):
    return torch.nn.functional.silu(x)
def _sigmoid(x):
    return torch.sigmoid(x)
def _layernorm(x, axis=-1, eps=1e-5):
    m = x.mean(dim=axis, keepdim=True)
    v = x.var(dim=axis, keepdim=True, unbiased=False)
    return (x - m) / torch.sqrt(v + eps)
def _scatter_add(tgt, idx, src, axis=0):
    return tgt.clone().index_add_(axis, idx, src)
def _segment_sum(src, seg, n):
    out = torch.zeros((n,) + src.shape[1:], dtype=src.dtype)
    return out.index_add_(0, seg, src)
def _pad(x, pw):
    flat = tuple(v for pair in reversed(pw) for v in pair)
    return torch.nn.functional.pad(x, flat)

kernel_name = 'sequential_preLN__sliding_block_cached__geglu_ffn__decode'

def setup_inputs():

    _w = (lambda a: (lambda t: t.to(torch.bfloat16) if t.is_floating_point() else t)(torch.as_tensor(a)))
    def _A_setup():
        B, Sq, D = 2, 1, 640
        Hq, Hkv, Sk, Dh = 32, 32, 8192, 192
        assert Hq % Hkv == 0, (Hq, Hkv)
        return {
            "x": _w((lambda *s: torch.randn(*s, dtype=torch.bfloat16) * 0.05)(B, Sq, D)),
            "k_cache": _w((lambda *s: torch.randn(*s, dtype=torch.bfloat16) * 3.2)(B, Hkv, Sk, Dh)),
            "v_cache": _w((lambda *s: torch.randn(*s, dtype=torch.bfloat16) * 0.4)(B, Hkv, Sk, Dh)),
            "wq": _w((lambda *s: torch.randn(*s, dtype=torch.bfloat16) * 3.2)(D, Hq * Dh) * (D ** -0.5)),
            "wo": _w((lambda *s: torch.randn(*s, dtype=torch.bfloat16) * 0.4)(Hq * Dh, D) * ((Hq * Dh) ** -0.5)),
        }
    _A_in = _A_setup()

    def _B_setup():
        B, S, D, F = 2, 1, 640, 1536
        return {
            "x": _w((lambda *s: torch.randn(*s, dtype=torch.bfloat16) * 0.05)(B, S, D)),
            "w_gate": _w((lambda *s: torch.randn(*s, dtype=torch.bfloat16) * 0.05)(D, F)),
            "w_up": _w((lambda *s: torch.randn(*s, dtype=torch.bfloat16) * 0.05)(D, F)),
            "w_down": _w((lambda *s: torch.randn(*s, dtype=torch.bfloat16) * 0.05)(F, D)),
        }
    _B_in = _B_setup()

    return {
        "A_x": _A_in["x"],
        "A_k_cache": _A_in["k_cache"],
        "A_v_cache": _A_in["v_cache"],
        "A_wq": _A_in["wq"],
        "A_wo": _A_in["wo"],
        "B_x": _B_in["x"],
        "B_w_gate": _B_in["w_gate"],
        "B_w_up": _B_in["w_up"],
        "B_w_down": _B_in["w_down"],
    }

def reference(A_x, A_k_cache, A_v_cache, A_wq, A_wo, B_x, B_w_gate, B_w_up, B_w_down):
    def _A_ref(x, k_cache, v_cache, wq, wo):
        B, Sq, D = x.shape
        Hq, Dh = 32, 192
        Hkv, Sk = k_cache.shape[1], k_cache.shape[2]
        W = min(4096, max(256, Sk // 4))
        rep = Hq // Hkv
        q = (lambda x, *d: x.permute(*d))((x @ wq).reshape(B, Sq, Hq, Dh), 0, 2, 1, 3)
        k = (lambda x, n, axis: torch.repeat_interleave(x, n, dim=axis))(k_cache[:, :, Sk - W:, :], rep, axis=1)
        v = (lambda x, n, axis: torch.repeat_interleave(x, n, dim=axis))(v_cache[:, :, Sk - W:, :], rep, axis=1)
        scores = torch.einsum("bhqd,bhkd->bhqk", q, k) * (Dh ** -0.5)
        p = _softmax(scores, axis=-1)
        o = torch.einsum("bhqk,bhkd->bhqd", p, v)
        return (lambda x, *d: x.permute(*d))(o, 0, 2, 1, 3).reshape(B, Sq, Hq * Dh) @ wo

    def _B_ref(x, w_gate, w_up, w_down):
        return (_gelu(x @ w_gate) * (x @ w_up)) @ w_down

    x = A_x
    h = x + _A_ref(_layernorm(x, axis=-1), A_k_cache, A_v_cache, A_wq, A_wo)
    h2 = h + _B_ref(_layernorm(h, axis=-1), B_w_gate, B_w_up, B_w_down)
    return h2
```

```python
class Asm:
    def __init__(self):
        self.lines = []
        self.lab = 0

    def __call__(self, s=""):
        for ln in s.split("\n"):
            self.lines.append("    " + ln.strip() if ln.strip() and not ln.strip().endswith(":") else ln.strip())

    def raw(self, s):
        self.lines.append(s)

    def label(self, name):
        self.lines.append(name + ":")

    def newlabel(self, base="L"):
        self.lab += 1
        return f"{base}_{self.lab}"

    def text(self):
        return "\n".join(self.lines) + "\n"


KARG = dict(x=0, k=8, v=16, wq=24, wo=32, bx=40, wg=48, wu=56, wd=64, out=72, dbg=80, ws=88)
SIZE = dict(x=2560, k=201326592, v=201326592, wq=640 * 6144 * 2, wo=6144 * 640 * 2,
            wg=640 * 1536 * 2, wu=640 * 1536 * 2, wd=1536 * 640 * 2, out=2560, dbg=256,
            ws=805306368)


def load_srds(a, spec):
    for name, sb in spec:
        a(f"s_load_dwordx2 s[{sb}:{sb+1}], s[0:1], {KARG[name]}")
    a("s_waitcnt lgkmcnt(0)")
    for name, sb in spec:
        a(f"s_and_b32 s{sb+1}, s{sb+1}, 0xffff")
        a(f"s_mov_b32 s{sb+2}, {SIZE[name]}")
        a(f"s_mov_b32 s{sb+3}, 0x00020000")


def bf16r(a, d, s):
    a(f"v_cvt_pk_bf16_f32 v{d}, v{s}, v{s}")
    a(f"v_lshlrev_b32 v{d}, 16, v{d}")


def wave_sum(a, v, vlane4, taddr, ttmp):
    for mask in (1, 2, 4, 8, 16, 32):
        a(f"v_xor_b32 v{taddr}, {mask*4}, v{vlane4}")
        a(f"ds_bpermute_b32 v{ttmp}, v{taddr}, v{v}")
        a("s_waitcnt lgkmcnt(0)")
        a(f"v_add_f32 v{v}, v{v}, v{ttmp}")


def emit_ln(a, vals, vlane4, t0, t1, t2, t3):
    a(f"v_add_f32 v{t0}, v{vals[0]}, v{vals[1]}")
    for v in vals[2:]:
        a(f"v_add_f32 v{t0}, v{t0}, v{v}")
    wave_sum(a, t0, vlane4, t2, t3)
    a(f"v_mul_f32 v{t0}, {1.0/640.0!r}, v{t0}")
    a(f"v_sub_f32 v{t2}, v{vals[0]}, v{t0}")
    a(f"v_mul_f32 v{t1}, v{t2}, v{t2}")
    for v in vals[1:]:
        a(f"v_sub_f32 v{t2}, v{v}, v{t0}")
        a(f"v_fmac_f32 v{t1}, v{t2}, v{t2}")
    wave_sum(a, t1, vlane4, t2, t3)
    a(f"v_mul_f32 v{t1}, {1.0/640.0!r}, v{t1}")
    bf16r(a, t0, t0)
    bf16r(a, t1, t1)
    a(f"v_add_f32 v{t1}, {1e-5!r}, v{t1}")
    bf16r(a, t1, t1)
    a(f"v_sqrt_f32 v{t1}, v{t1}")
    a("s_nop 0")
    bf16r(a, t1, t1)
    a(f"v_rcp_f32 v{t1}, v{t1}")
    a("s_nop 0")
    for v in vals:
        a(f"v_sub_f32 v{v}, v{v}, v{t0}")
        bf16r(a, v, v)
        a(f"v_mul_f32 v{v}, v{v}, v{t1}")
        bf16r(a, v, v)


def kernel_header(a, name):
    a.raw(f".globl {name}")
    a.raw(".p2align 8")
    a.raw(f".type {name},@function")
    a.label(name)


def kernel_desc(name, vgpr, sgpr=96):
    acc = (vgpr + 3) // 4 * 4
    return f""".amdhsa_kernel {name}
  .amdhsa_next_free_vgpr {vgpr}
  .amdhsa_next_free_sgpr {sgpr}
  .amdhsa_accum_offset {acc}
  .amdhsa_group_segment_fixed_size 0
  .amdhsa_kernarg_size 96
  .amdhsa_user_sgpr_count 2
  .amdhsa_user_sgpr_kernarg_segment_ptr 1
  .amdhsa_system_sgpr_workgroup_id_x 1
.end_amdhsa_kernel
"""
```

```python
import math
import sys
from common import *

NAME = "sequential_preLN__sliding_block_cached__geglu_ffn__decode"
Q_OFF = 0
ACC1_OFF = 32768
ACC2_OFF = 40960
PART_OFF = 65536
NSPLIT = 8
DEBUG = False
LOG2E = math.log2(math.e)
SCALE = 192 ** -0.5


def f32hex(x):
    import struct
    return "0x%08x" % struct.unpack("<I", struct.pack("<f", x))[0]


def unpack_fma(a, wreg, accs, xs):
    a(f"v_lshlrev_b32 v4, 16, v{wreg}")
    a(f"v_and_b32 v5, 0xffff0000, v{wreg}")
    for (lo, hi), x in zip(accs, xs):
        a(f"v_fmac_f32 v{lo}, v{x}, v4")
        a(f"v_fmac_f32 v{hi}, v{x}, v5")


def prologue_ids(a):
    a("v_and_b32 v1, 63, v0")
    a("v_lshrrev_b32 v2, 6, v0")
    a("v_lshlrev_b32 v3, 2, v1")


def k_q(a):
    name = "kq_kernel"
    kernel_header(a, name)
    a("s_cmp_ge_u32 s2, 96")
    a("s_cbranch_scc1 kq_done")
    load_srds(a, [("x", 8), ("wq", 12), ("ws", 16)])
    prologue_ids(a)
    a("v_and_b32 v6, 1, v2")
    a("v_mul_u32_u24 v7, 1280, v6")
    a("v_add_u32 v7, v7, v3")
    for i in range(5):
        a(f"buffer_load_dword v{8+i}, v7, s[8:11], 0 offen offset:{i*256}")
    a("v_and_b32 v28, 7, v0")
    a("v_lshrrev_b32 v29, 3, v0")
    a("s_movk_i32 s21, 12288")
    a("v_mul_lo_u32 v30, v29, s21")
    a("v_lshl_add_u32 v30, v28, 4, v30")
    a("s_lshl_b32 s20, s2, 7")
    for i in range(20):
        a(f"buffer_load_dwordx4 v[{32+4*i}:{35+4*i}], v30, s[12:15], s20 offen")
        if i < 19:
            a("s_add_u32 s20, s20, 393216")
    a("s_cmp_lg_u32 s2, 0")
    a("s_cbranch_scc1 kq_nozero")
    a("v_mov_b32 v152, 0")
    a("v_mov_b32 v153, 0")
    a("v_mov_b32 v154, 0")
    a("v_mov_b32 v155, 0")
    a("v_lshlrev_b32 v156, 4, v0")
    a(f"v_add_u32 v156, {ACC1_OFF}, v156")
    for i in range(4):
        a(f"buffer_store_dwordx4 v[152:155], v156, s[16:19], 0 offen")
        if i < 3:
            a("v_add_u32 v156, 4096, v156")
    a("s_waitcnt vmcnt(0)")
    a.label("kq_nozero")
    a("s_waitcnt vmcnt(20)")
    vals = list(range(14, 24))
    for i in range(5):
        a(f"v_lshlrev_b32 v{14+2*i}, 16, v{8+i}")
        a(f"v_and_b32 v{15+2*i}, 0xffff0000, v{8+i}")
    emit_ln(a, vals, 3, 24, 25, 26, 27)
    a("v_lshlrev_b32 v24, 4, v1")
    a("v_lshl_add_u32 v24, v6, 2, v24")
    for i in range(5):
        a(f"ds_write_b32 v24, v{14+2*i} offset:{i*1024}")
        a(f"ds_write_b32 v24, v{15+2*i} offset:{i*1024+8}")
    a("s_waitcnt lgkmcnt(0)")
    a("s_barrier")
    a("v_lshlrev_b32 v24, 3, v29")
    for i in range(20):
        a(f"ds_read_b64 v[{112+2*i}:{113+2*i}], v24 offset:{i*256}")
    for r in range(152, 168):
        a(f"v_mov_b32 v{r}, 0")
    a("s_waitcnt lgkmcnt(0)")
    for i in range(20):
        a(f"s_waitcnt vmcnt({19-i})")
        for r in range(4):
            unpack_fma(a, 32 + 4 * i + r,
                       [(152 + 2 * r, 153 + 2 * r), (160 + 2 * r, 161 + 2 * r)],
                       [112 + 2 * i, 113 + 2 * i])
    a("v_lshlrev_b32 v24, 9, v29")
    a("v_lshl_add_u32 v24, v28, 5, v24")
    a(f"ds_write_b128 v24, v[152:155] offset:{5120}")
    a(f"ds_write_b128 v24, v[156:159] offset:{5120+16}")
    a(f"ds_write_b128 v24, v[160:163] offset:{5120+256}")
    a(f"ds_write_b128 v24, v[164:167] offset:{5120+256+16}")
    a("s_waitcnt lgkmcnt(0)")
    a("s_barrier")
    a("v_cmp_gt_u32 vcc, 128, v0")
    a("s_and_saveexec_b64 s[22:23], vcc")
    a("s_cbranch_execz kq_done")
    a("v_lshlrev_b32 v24, 2, v0")
    for rg in range(32):
        a(f"ds_read_b32 v{32+rg}, v24 offset:{5120+rg*512}")
    a("s_waitcnt lgkmcnt(0)")
    a("v_add_f32 v25, v32, v33")
    for rg in range(2, 32):
        a(f"v_add_f32 v25, v25, v{32+rg}")
    a("v_cvt_pk_bf16_f32 v25, v25, v25")
    a("v_mul_u32_u24 v26, 12288, v2")
    a("v_lshl_add_u32 v26, v1, 1, v26")
    a("s_lshl_b32 s20, s2, 7")
    a(f"buffer_store_short v25, v26, s[16:19], s20 offen offset:{Q_OFF}")
    a.label("kq_done")
    a("s_endpgm")
    return name, 168


def k_a(a):
    name = "ka_kernel"
    kernel_header(a, name)
    a("s_cmp_ge_u32 s2, 512")
    a("s_cbranch_scc1 ka_done")
    load_srds(a, [("k", 8), ("v", 12), ("ws", 16)])
    prologue_ids(a)
    a("s_lshr_b32 s20, s2, 3")
    a("s_and_b32 s21, s2, 7")
    a("v_and_b32 v6, 15, v1")
    a("v_lshrrev_b32 v7, 4, v1")
    a("s_mul_i32 s22, s20, 384")
    a("v_lshlrev_b32 v8, 4, v7")
    Q = 160
    for j in range(6):
        a(f"buffer_load_dwordx4 v[{Q+4*j}:{Q+4*j+3}], v8, s[16:19], s22 offen offset:{Q_OFF + j*64}")
    a("v_mul_u32_u24 v9, 384, v6")
    a("v_add_u32 v9, v9, v8")
    a("v_mul_u32_u24 v10, 24576, v2")
    a("v_add_u32 v9, v9, v10")
    a("s_mul_i32 s24, s20, 3145728")
    a("s_mul_i32 s25, s21, 98304")
    a("s_add_u32 s24, s24, s25")
    a("s_add_u32 s24, s24, 2359296")
    a("s_add_u32 s25, s24, 6144")
    a("s_add_u32 s26, s24, 12288")
    a("s_add_u32 s27, s24, 18432")
    KB = [16, 40, 64, 88]
    VB = [112, 136, 16, 40]

    def ld(srd, base, t):
        for j in range(6):
            a(f"buffer_load_dwordx4 v[{base+4*j}:{base+4*j+3}], v9, s[{srd}:{srd+3}], s{24+t} offen offset:{j*64}")

    for t in range(4):
        ld(8, KB[t], t)
    ld(12, VB[0], 0)
    ld(12, VB[1], 1)
    D = 184
    waits = [30, 30, 30, 24]
    for t in range(4):
        a(f"s_waitcnt vmcnt({waits[t]})")
        for j in range(6):
            c = "0" if j == 0 else f"v[{D+4*t}:{D+4*t+3}]"
            a(f"v_mfma_f32_16x16x32_bf16 v[{D+4*t}:{D+4*t+3}], v[{Q+4*j}:{Q+4*j+3}], v[{KB[t]+4*j}:{KB[t]+4*j+3}], {c}")
        if t < 2:
            ld(12, VB[2 + t], 2 + t)
    a("s_nop 7")
    a("s_nop 1")
    a(f"s_mov_b32 s28, {f32hex(SCALE)}")
    a(f"s_mov_b32 s29, {f32hex(LOG2E)}")
    for t in range(4):
        s = D + 4 * t
        bf16r(a, s, s)
        a(f"v_mul_f32 v{s}, s28, v{s}")
        bf16r(a, s, s)
    a(f"v_max_f32 v11, v{D}, v{D+4}")
    a(f"v_max3_f32 v11, v11, v{D+8}, v{D+12}")
    for r in (1, 2, 4, 8):
        a("s_nop 1")
        a(f"v_max_f32_dpp v11, v11, v11 row_ror:{r} row_mask:0xf bank_mask:0xf")
    for t in range(4):
        s = D + 4 * t
        a(f"v_sub_f32 v{s}, v{s}, v11")
        a(f"v_mul_f32 v{s}, s29, v{s}")
        a(f"v_exp_f32 v{s}, v{s}")
    a("s_nop 0")
    a(f"v_add_f32 v12, v{D}, v{D+4}")
    a(f"v_add_f32 v12, v12, v{D+8}")
    a(f"v_add_f32 v12, v12, v{D+12}")
    ACC = 200
    vw = [18, 12, 6, 0]
    for t in range(4):
        a(f"s_waitcnt vmcnt({vw[t]})")
        p = D + 4 * t
        for r in range(24):
            w = VB[t] + r
            a(f"v_lshlrev_b32 v4, 16, v{w}")
            a(f"v_and_b32 v5, 0xffff0000, v{w}")
            if t == 0:
                a(f"v_mul_f32 v{ACC+2*r}, v{p}, v4")
                a(f"v_mul_f32 v{ACC+2*r+1}, v{p}, v5")
            else:
                a(f"v_fmac_f32 v{ACC+2*r}, v{p}, v4")
                a(f"v_fmac_f32 v{ACC+2*r+1}, v{p}, v5")
    regs = list(range(ACC, ACC + 48)) + [12]
    for r in (1, 2, 4, 8):
        a("s_nop 1")
        for x in regs:
            a(f"v_add_f32_dpp v{x}, v{x}, v{x} row_ror:{r} row_mask:0xf bank_mask:0xf")
    a("v_lshlrev_b32 v13, 10, v2")
    a("v_lshl_add_u32 v14, v7, 5, v13")
    a("v_cmp_eq_u32 vcc, 0, v6")
    a("s_and_saveexec_b64 s[30:31], vcc")
    for j in range(6):
        a(f"ds_write_b128 v14, v[{ACC+8*j}:{ACC+8*j+3}] offset:{j*128}")
        a(f"ds_write_b128 v14, v[{ACC+8*j+4}:{ACC+8*j+7}] offset:{j*128+16}")
    a("v_mov_b32 v18, v11")
    a("v_mov_b32 v19, v12")
    a("ds_write_b64 v13, v[18:19] offset:768")
    a("s_mov_b64 exec, s[30:31]")
    a("s_waitcnt lgkmcnt(0)")
    a("s_barrier")
    a("v_lshlrev_b32 v17, 2, v0")
    a("v_mov_b32 v18, 0")
    for w in range(4):
        a(f"ds_read_b64 v[{20+2*w}:{21+2*w}], v18 offset:{w*1024+768}")
        a(f"ds_read_b32 v{30+w}, v17 offset:{w*1024}")
    a("s_waitcnt lgkmcnt(0)")
    a("v_max_f32 v34, v20, v22")
    a("v_max3_f32 v34, v34, v24, v26")
    for w in range(4):
        a(f"v_sub_f32 v{20+2*w}, v{20+2*w}, v34")
        a(f"v_mul_f32 v{20+2*w}, s29, v{20+2*w}")
        a(f"v_exp_f32 v{20+2*w}, v{20+2*w}")
    a("s_nop 0")
    a("v_mul_f32 v35, v20, v21")
    a("v_mul_f32 v36, v20, v30")
    for w in range(1, 4):
        a(f"v_fmac_f32 v35, v{20+2*w}, v{21+2*w}")
        a(f"v_fmac_f32 v36, v{20+2*w}, v{30+w}")
    a("v_cmp_eq_u32 vcc, 192, v0")
    a("s_nop 1")
    a("v_cndmask_b32 v36, v36, v34, vcc")
    a("v_cmp_eq_u32 vcc, 193, v0")
    a("s_nop 1")
    a("v_cndmask_b32 v36, v36, v35, vcc")
    a("v_cmp_gt_u32 vcc, 194, v0")
    a("s_and_saveexec_b64 s[30:31], vcc")
    a("s_cbranch_execz ka_done")
    a("s_lshl_b32 s22, s2, 10")
    a(f"s_add_u32 s22, s22, {PART_OFF}")
    a("buffer_store_dword v36, v17, s[16:19], s22 offen")
    a.label("ka_done")
    a("s_endpgm")
    return name, 248


def k_b(a):
    name = "kb_kernel"
    kernel_header(a, name)
    a("s_cmp_ge_u32 s2, 320")
    a("s_cbranch_scc1 kb_done")
    load_srds(a, [("wo", 12), ("ws", 16)])
    prologue_ids(a)
    a("s_and_b32 s20, s2, 31")
    a("s_lshr_b32 s21, s2, 5")
    a("v_lshlrev_b32 v6, 2, v0")
    a("v_mov_b32 v7, 768")
    a("s_lshl_b32 s22, s20, 13")
    a(f"s_add_u32 s22, s22, {PART_OFF}")
    a("s_add_u32 s23, s22, 262144")
    for b in range(2):
        for s in range(NSPLIT):
            a(f"buffer_load_dword v{64+b*8+s}, v6, s[16:19], s{22+b} offen offset:{s*1024}" if s < 4 else
              f"buffer_load_dword v{64+b*8+s}, v6, s[16:19], s{24+b} offen offset:{(s-4)*1024}")
            a(f"buffer_load_dwordx2 v[{80+(b*8+s)*2}:{81+(b*8+s)*2}], v7, s[16:19], s{22+b} offen offset:{s*1024}" if s < 4 else
              f"buffer_load_dwordx2 v[{80+(b*8+s)*2}:{81+(b*8+s)*2}], v7, s[16:19], s{24+b} offen offset:{(s-4)*1024}")
            if s == 0 and b == 0:
                a("s_add_u32 s24, s22, 4096")
                a("s_add_u32 s25, s23, 4096")
    a("v_and_b32 v28, 7, v0")
    a("v_lshrrev_b32 v29, 3, v0")
    a("v_mul_u32_u24 v30, 1280, v29")
    a("v_lshl_add_u32 v30, v28, 4, v30")
    a("s_mul_i32 s26, s20, 245760")
    a("s_lshl_b32 s27, s21, 7")
    a("s_add_u32 s26, s26, s27")
    for i in range(6):
        a(f"buffer_load_dwordx4 v[{32+4*i}:{35+4*i}], v30, s[12:15], s26 offen")
        if i < 5:
            a("s_add_u32 s26, s26, 40960")
    a(f"s_mov_b32 s29, {f32hex(LOG2E)}")
    a("s_waitcnt vmcnt(6)")
    for b in range(2):
        M = [80 + (b * 8 + s) * 2 for s in range(8)]
        O = [64 + b * 8 + s for s in range(8)]
        a(f"v_max_f32 v8, v{M[0]}, v{M[1]}")
        for s in range(2, 8, 2):
            a(f"v_max3_f32 v8, v8, v{M[s]}, v{M[s+1]}")
        for s in range(8):
            a(f"v_sub_f32 v{M[s]}, v{M[s]}, v8")
            a(f"v_mul_f32 v{M[s]}, s29, v{M[s]}")
            a(f"v_exp_f32 v{M[s]}, v{M[s]}")
        a("s_nop 0")
        a(f"v_mul_f32 v9, v{M[0]}, v{M[0]+1}")
        a(f"v_mul_f32 v10, v{M[0]}, v{O[0]}")
        for s in range(1, 8):
            a(f"v_fmac_f32 v9, v{M[s]}, v{M[s]+1}")
            a(f"v_fmac_f32 v10, v{M[s]}, v{O[s]}")
        a("v_rcp_f32 v9, v9")
        a("s_nop 0")
        a(f"v_mul_f32 v{12+b}, v10, v9")
        bf16r(a, 12 + b, 12 + b)
    a("v_lshlrev_b32 v11, 3, v0")
    a("v_cmp_gt_u32 vcc, 192, v0")
    a("s_and_saveexec_b64 s[30:31], vcc")
    a("ds_write_b64 v11, v[12:13]")
    a("s_mov_b64 exec, s[30:31]")
    a("s_waitcnt lgkmcnt(0)")
    a("s_barrier")
    a("v_lshlrev_b32 v24, 3, v29")
    for i in range(6):
        a(f"ds_read_b64 v[{112+2*i}:{113+2*i}], v24 offset:{i*256}")
    for r in range(152, 168):
        a(f"v_mov_b32 v{r}, 0")
    a("s_waitcnt lgkmcnt(0)")
    for i in range(6):
        a(f"s_waitcnt vmcnt({5-i})")
        for r in range(4):
            unpack_fma(a, 32 + 4 * i + r,
                       [(152 + 2 * r, 153 + 2 * r), (160 + 2 * r, 161 + 2 * r)],
                       [112 + 2 * i, 113 + 2 * i])
    a("v_lshlrev_b32 v24, 9, v29")
    a("v_lshl_add_u32 v24, v28, 5, v24")
    a(f"ds_write_b128 v24, v[152:155] offset:{2048}")
    a(f"ds_write_b128 v24, v[156:159] offset:{2048+16}")
    a(f"ds_write_b128 v24, v[160:163] offset:{2048+256}")
    a(f"ds_write_b128 v24, v[164:167] offset:{2048+256+16}")
    a("s_waitcnt lgkmcnt(0)")
    a("s_barrier")
    a("v_cmp_gt_u32 vcc, 128, v0")
    a("s_and_saveexec_b64 s[22:23], vcc")
    a("s_cbranch_execz kb_done")
    a("v_lshlrev_b32 v24, 2, v0")
    for rg in range(32):
        a(f"ds_read_b32 v{32+rg}, v24 offset:{2048+rg*512}")
    a("s_waitcnt lgkmcnt(0)")
    a("v_add_f32 v25, v32, v33")
    for rg in range(2, 32):
        a(f"v_add_f32 v25, v25, v{32+rg}")
    a("v_mul_u32_u24 v26, 2560, v2")
    a("v_lshl_add_u32 v26, v1, 2, v26")
    a("s_lshl_b32 s27, s21, 8")
    a(f"s_add_u32 s27, s27, {ACC1_OFF}")
    a("buffer_atomic_add_f32 v25, v26, s[16:19], s27 offen")
    a.label("kb_done")
    a("s_endpgm")
    return name, 168


def k_c(a):
    name = "kc_kernel"
    kernel_header(a, name)
    a("s_cmp_ge_u32 s2, 96")
    a("s_cbranch_scc1 kc_done")
    load_srds(a, [("x", 8), ("wg", 12), ("ws", 16), ("wu", 20), ("wd", 24), ("out", 28), ("dbg", 32)])
    prologue_ids(a)
    a("s_and_b32 s40, s2, 7")
    a("s_mul_i32 s40, s40, 12")
    a("s_lshr_b32 s41, s2, 3")
    a("s_add_u32 s40, s40, s41")
    a("v_and_b32 v6, 1, v2")
    a("v_mul_u32_u24 v7, 1280, v6")
    a("v_add_u32 v7, v7, v3")
    a("v_lshlrev_b32 v27, 1, v7")
    for i in range(5):
        a(f"buffer_load_dword v{8+i}, v7, s[8:11], 0 offen offset:{i*256}")
    a(f"s_mov_b32 s42, {ACC1_OFF}")
    for i in range(5):
        a(f"buffer_load_dwordx2 v[{100+2*i}:{101+2*i}], v27, s[16:19], s42 offen offset:{i*512}")
    a("v_and_b32 v28, 1, v0")
    a("v_lshrrev_b32 v29, 1, v0")
    a("v_mul_u32_u24 v30, 3072, v29")
    a("v_lshl_add_u32 v30, v28, 4, v30")
    a("s_lshl_b32 s43, s40, 5")
    for i in range(5):
        a(f"buffer_load_dwordx4 v[{32+4*i}:{35+4*i}], v30, s[12:15], s43 offen")
        a(f"buffer_load_dwordx4 v[{52+4*i}:{55+4*i}], v30, s[20:23], s43 offen")
        if i < 4:
            a("s_add_u32 s43, s43, 393216")
    a("v_mul_u32_u24 v31, 205, v0")
    a("v_lshrrev_b32 v31, 14, v31")
    a("v_mul_u32_u24 v98, 80, v31")
    a("v_sub_u32 v98, v0, v98")
    a("v_mul_u32_u24 v99, 1280, v31")
    a("v_lshl_add_u32 v99, v98, 4, v99")
    a("s_mul_i32 s43, s40, 20480")
    for i in range(6):
        a(f"buffer_load_dwordx4 v[{72+4*i}:{75+4*i}], v99, s[24:27], s43 offen")
        if i < 5:
            a("s_add_u32 s43, s43, 3840")
    a("s_waitcnt vmcnt(16)")
    vals = list(range(14, 24))
    H = list(range(110, 120))
    for i in range(5):
        a(f"v_lshlrev_b32 v{14+2*i}, 16, v{8+i}")
        a(f"v_and_b32 v{15+2*i}, 0xffff0000, v{8+i}")
    for e in range(10):
        bf16r(a, 100 + e, 100 + e)
        a(f"v_add_f32 v{14+e}, v{14+e}, v{100+e}")
        bf16r(a, 14 + e, 14 + e)
        a(f"v_mov_b32 v{H[e]}, v{14+e}")
    emit_ln(a, vals, 3, 24, 25, 26, 5)
    a("v_lshlrev_b32 v24, 4, v1")
    a("v_lshl_add_u32 v24, v6, 2, v24")
    for i in range(5):
        a(f"ds_write_b32 v24, v{14+2*i} offset:{i*1024}")
        a(f"ds_write_b32 v24, v{15+2*i} offset:{i*1024+8}")
    a("s_waitcnt lgkmcnt(0)")
    a("s_barrier")
    a("v_lshlrev_b32 v24, 3, v29")
    for i in range(5):
        a(f"ds_read_b64 v[{120+2*i}:{121+2*i}], v24 offset:{i*1024}")
    A = 132
    for r in range(A, A + 32):
        a(f"v_mov_b32 v{r}, 0")
    a("s_waitcnt lgkmcnt(0)")
    for i in range(5):
        for m in range(2):
            a(f"s_waitcnt vmcnt({6 + (4-i)*2 + (1-m)})")
            for r in range(4):
                base = A + m * 16
                unpack_fma(a, (32 if m == 0 else 52) + 4 * i + r,
                           [(base + 2 * r, base + 2 * r + 1), (base + 8 + 2 * r, base + 9 + 2 * r)],
                           [120 + 2 * i, 121 + 2 * i])
    RED = 5120
    a("v_lshlrev_b32 v24, 8, v29")
    a("v_lshl_add_u32 v24, v28, 5, v24")
    for mb in range(4):
        a(f"ds_write_b128 v24, v[{A+8*mb}:{A+8*mb+3}] offset:{RED+mb*64}")
        a(f"ds_write_b128 v24, v[{A+8*mb+4}:{A+8*mb+7}] offset:{RED+mb*64+16}")
    a("s_waitcnt lgkmcnt(0)")
    a("s_barrier")
    a("v_lshlrev_b32 v24, 13, v2")
    a("v_add_u32 v24, v24, v3")
    for r in range(32):
        a(f"ds_read_b32 v{A+r}, v24 offset:{RED+r*256}")
    a("s_waitcnt lgkmcnt(0)")
    a(f"v_add_f32 v25, v{A}, v{A+1}")
    for r in range(2, 32):
        a(f"v_add_f32 v25, v25, v{A+r}")
    RED2 = RED + 32768
    a("v_lshlrev_b32 v24, 2, v0")
    a(f"ds_write_b32 v24, v25 offset:{RED2}")
    a("s_waitcnt lgkmcnt(0)")
    a("s_barrier")
    GL = RED2 + 1024
    a("v_cmp_gt_u32 vcc, 36, v0")
    a("s_and_saveexec_b64 s[44:45], vcc")
    a("s_cbranch_execz kc_skipg")
    a("v_lshlrev_b32 v24, 2, v0")
    for w in range(4):
        a(f"ds_read_b32 v{A+w}, v24 offset:{RED2+w*256}")
        a(f"ds_read_b32 v{A+4+w}, v24 offset:{RED2+w*256+128}")
    a("s_waitcnt lgkmcnt(0)")
    a(f"v_add_f32 v25, v{A}, v{A+1}")
    a(f"v_add_f32 v25, v25, v{A+2}")
    a(f"v_add_f32 v25, v25, v{A+3}")
    a(f"v_add_f32 v26, v{A+4}, v{A+5}")
    a(f"v_add_f32 v26, v26, v{A+6}")
    a(f"v_add_f32 v26, v26, v{A+7}")
    bf16r(a, 25, 25)
    bf16r(a, 26, 26)
    a("v_mul_f32 v4, v25, v25")
    a("v_mul_f32 v4, v4, v25")
    a(f"v_mov_b32 v5, {f32hex(0.044715)}")
    a("v_fma_f32 v4, v4, v5, v25")
    a(f"v_mul_f32 v4, {f32hex(2.0*math.sqrt(2.0/math.pi)*LOG2E)}, v4")
    a("v_exp_f32 v4, v4")
    a("s_nop 0")
    a("v_add_f32 v4, 1.0, v4")
    a("v_rcp_f32 v4, v4")
    a("s_nop 0")
    a("v_fma_f32 v4, v4, -2.0, 2.0")
    a("v_mul_f32 v4, 0.5, v4")
    a("v_mul_f32 v4, v4, v25")
    bf16r(a, 4, 4)
    a("v_mul_f32 v4, v4, v26")
    bf16r(a, 4, 4)
    a("v_cmp_gt_u32 vcc, 32, v0")
    a("s_nop 1")
    a("v_cndmask_b32 v4, 0, v4, vcc")
    a("v_and_b32 v5, 15, v0")
    a("v_lshlrev_b32 v5, 3, v5")
    a("v_lshrrev_b32 v24, 4, v0")
    a("v_lshl_add_u32 v5, v24, 2, v5")
    a("v_lshlrev_b32 v24, 2, v0")
    a("v_cndmask_b32 v5, v24, v5, vcc")
    a(f"ds_write_b32 v5, v4 offset:{GL}")
    if DEBUG:
        a("v_lshlrev_b32 v24, 4, v0")
        a("s_lshl_b32 s47, s40, 10")
        a("s_add_u32 s47, s47, 0x80000")
        a("v_mov_b32 v6, v4")
        a("v_mov_b32 v4, v25")
        a("v_mov_b32 v5, v26")
        a("buffer_store_dwordx4 v[4:7], v24, s[16:19], s47 offen")
    a.label("kc_skipg")
    a("s_mov_b64 exec, s[44:45]")
    a("s_waitcnt lgkmcnt(0)")
    a("s_barrier")
    a("v_lshlrev_b32 v24, 3, v31")
    for i in range(6):
        a(f"ds_read_b64 v[{120+2*i}:{121+2*i}], v24 offset:{GL+i*24}")
    for r in range(A, A + 16):
        a(f"v_mov_b32 v{r}, 0")
    a("s_waitcnt lgkmcnt(0)")
    for i in range(6):
        a(f"s_waitcnt vmcnt({5-i})")
        for r in range(4):
            unpack_fma(a, 72 + 4 * i + r,
                       [(A + 2 * r, A + 2 * r + 1), (A + 8 + 2 * r, A + 9 + 2 * r)],
                       [120 + 2 * i, 121 + 2 * i])
    a("v_mul_u32_u24 v24, 5120, v31")
    a("v_lshl_add_u32 v24, v98, 5, v24")
    a("v_cmp_gt_u32 vcc, 240, v0")
    a("s_and_saveexec_b64 s[44:45], vcc")
    a(f"ds_write_b128 v24, v[{A}:{A+3}] offset:{RED}")
    a(f"ds_write_b128 v24, v[{A+4}:{A+7}] offset:{RED+16}")
    a(f"ds_write_b128 v24, v[{A+8}:{A+11}] offset:{RED+2560}")
    a(f"ds_write_b128 v24, v[{A+12}:{A+15}] offset:{RED+2560+16}")
    a("s_mov_b64 exec, s[44:45]")
    a("s_waitcnt lgkmcnt(0)")
    a("s_barrier")
    a("v_lshlrev_b32 v24, 2, v0")
    for k in range(5):
        for r in range(3):
            a(f"ds_read_b32 v{A+k*3+r}, v24 offset:{RED+r*5120+k*1024}")
    a("s_waitcnt lgkmcnt(0)")
    a(f"s_mov_b32 s42, {ACC2_OFF}")
    for k in range(5):
        a(f"v_add_f32 v{A+k*3}, v{A+k*3}, v{A+k*3+1}")
        a(f"v_add_f32 v{A+k*3}, v{A+k*3}, v{A+k*3+2}")
        if k == 4:
            a(f"s_mov_b32 s42, {ACC2_OFF+4096}")
        a(f"buffer_atomic_add_f32 v{A+k*3}, v24, s[16:19], s42 offen offset:{(k%4)*1024}")
    a("s_waitcnt vmcnt(0)")
    a("s_barrier")
    a("v_cmp_eq_u32 vcc, 0, v0")
    a("s_and_saveexec_b64 s[44:45], vcc")
    a("s_cbranch_execz kc_nocnt")
    a("v_mov_b32 v4, 1")
    a("v_mov_b32 v5, 0")
    a("buffer_atomic_add v4, v5, s[32:35], 0 offen sc0")
    a("s_waitcnt vmcnt(0)")
    a(f"ds_write_b32 v5, v4 offset:{GL}")
    a.label("kc_nocnt")
    a("s_mov_b64 exec, s[44:45]")
    a("s_waitcnt lgkmcnt(0)")
    a("s_barrier")
    a("v_mov_b32 v5, 0")
    a(f"ds_read_b32 v4, v5 offset:{GL}")
    a("s_waitcnt lgkmcnt(0)")
    a("v_readfirstlane_b32 s46, v4")
    a("s_cmp_lg_u32 s46, 95")
    a("s_cbranch_scc1 kc_done")
    a("v_cmp_gt_u32 vcc, 128, v0")
    a("s_and_saveexec_b64 s[44:45], vcc")
    a("s_cbranch_execz kc_done")
    a(f"s_mov_b32 s42, {ACC2_OFF}")
    for i in range(5):
        a(f"buffer_load_dwordx2 v[{100+2*i}:{101+2*i}], v27, s[16:19], s42 offen offset:{i*512} sc0 sc1")
    a("s_waitcnt vmcnt(0)")
    for e in range(10):
        bf16r(a, 100 + e, 100 + e)
        a(f"v_add_f32 v{100+e}, v{100+e}, v{H[e]}")
    for i in range(5):
        a(f"v_cvt_pk_bf16_f32 v{8+i}, v{100+2*i}, v{101+2*i}")
        a(f"buffer_store_dword v{8+i}, v7, s[28:31], 0 offen offset:{i*256}")
    a.label("kc_done")
    a("s_endpgm")
    return name, 168


def main(out):
    a = Asm()
    hdr = open("cdna_kernels/" + NAME + ".s.ref").read().split("; Override launch geometry")[0]
    launches = [
        ("kq_kernel", 96, 21504),
        ("ka_kernel", 512, 4096),
        ("kb_kernel", 320, 2048 + 16384),
        ("kc_kernel", 96, 5120 + 32768 + 1024 + 256),
    ]
    txt = hdr
    for k, g, l in launches:
        txt += f"; @launch kernel={k} grid=({g},1,1) block=(256,1,1) lds={l}\n"
    txt += '.amdgcn_target "amdgcn-amd-amdhsa--gfx950"\n.text\n'
    descs = []
    for fn in (k_q, k_a, k_b, k_c):
        n, v = fn(a)
        descs.append(kernel_desc(n, v))
    txt += a.text()
    txt += '.section .rodata,"a"\n.p2align 6\n'
    for d in descs:
        txt += ".p2align 6\n" + d
    open(out, "w").write(txt)


if __name__ == "__main__":
    main(sys.argv[1] if len(sys.argv) > 1 else "cdna_kernels/" + NAME + ".s")
```

```python
import math
import sys
from common import *

NAME = "sequential_preLN__sliding_block_cached__geglu_ffn__decode"
Q_OFF = 0
ACC1_OFF = 32768
ACC2_OFF = 40960
PART_OFF = 65536
NSPLIT = 8
DEBUG = False
LOG2E = math.log2(math.e)
SCALE = 192 ** -0.5


def f32hex(x):
    import struct
    return "0x%08x" % struct.unpack("<I", struct.pack("<f", x))[0]


def unpack_fma(a, wreg, accs, xs):
    a(f"v_lshlrev_b32 v4, 16, v{wreg}")
    a(f"v_and_b32 v5, 0xffff0000, v{wreg}")
    for (lo, hi), x in zip(accs, xs):
        a(f"v_fmac_f32 v{lo}, v{x}, v4")
        a(f"v_fmac_f32 v{hi}, v{x}, v5")


def prologue_ids(a):
    a("v_and_b32 v1, 63, v0")
    a("v_lshrrev_b32 v2, 6, v0")
    a("v_lshlrev_b32 v3, 2, v1")


def k_q(a):
    name = "kq_kernel"
    kernel_header(a, name)
    a("s_cmp_ge_u32 s2, 96")
    a("s_cbranch_scc1 kq_done")
    load_srds(a, [("x", 8), ("wq", 12), ("ws", 16)])
    prologue_ids(a)
    a("v_and_b32 v6, 1, v2")
    a("v_mul_u32_u24 v7, 1280, v6")
    a("v_add_u32 v7, v7, v3")
    for i in range(5):
        a(f"buffer_load_dword v{8+i}, v7, s[8:11], 0 offen offset:{i*256}")
    a("v_and_b32 v28, 7, v0")
    a("v_lshrrev_b32 v29, 3, v0")
    a("s_movk_i32 s21, 12288")
    a("v_mul_lo_u32 v30, v29, s21")
    a("v_lshl_add_u32 v30, v28, 4, v30")
    a("s_lshl_b32 s20, s2, 7")
    for i in range(20):
        a(f"buffer_load_dwordx4 v[{32+4*i}:{35+4*i}], v30, s[12:15], s20 offen nt")
        if i < 19:
            a("s_add_u32 s20, s20, 393216")
    a("s_cmp_lg_u32 s2, 0")
    a("s_cbranch_scc1 kq_nozero")
    a("v_mov_b32 v152, 0")
    a("v_mov_b32 v153, 0")
    a("v_mov_b32 v154, 0")
    a("v_mov_b32 v155, 0")
    a("v_lshlrev_b32 v156, 4, v0")
    a(f"v_add_u32 v156, {ACC1_OFF}, v156")
    for i in range(4):
        a(f"buffer_store_dwordx4 v[152:155], v156, s[16:19], 0 offen")
        if i < 3:
            a("v_add_u32 v156, 4096, v156")
    a("s_waitcnt vmcnt(0)")
    a.label("kq_nozero")
    a("s_waitcnt vmcnt(20)")
    vals = list(range(14, 24))
    for i in range(5):
        a(f"v_lshlrev_b32 v{14+2*i}, 16, v{8+i}")
        a(f"v_and_b32 v{15+2*i}, 0xffff0000, v{8+i}")
    emit_ln(a, vals, 3, 24, 25, 26, 27)
    a("v_lshlrev_b32 v24, 4, v1")
    a("v_lshl_add_u32 v24, v6, 2, v24")
    for i in range(5):
        a(f"ds_write_b32 v24, v{14+2*i} offset:{i*1024}")
        a(f"ds_write_b32 v24, v{15+2*i} offset:{i*1024+8}")
    a("s_waitcnt lgkmcnt(0)")
    a("s_barrier")
    a("v_lshlrev_b32 v24, 3, v29")
    for i in range(20):
        a(f"ds_read_b64 v[{112+2*i}:{113+2*i}], v24 offset:{i*256}")
    for r in range(152, 168):
        a(f"v_mov_b32 v{r}, 0")
    a("s_waitcnt lgkmcnt(0)")
    for i in range(20):
        a(f"s_waitcnt vmcnt({19-i})")
        for r in range(4):
            unpack_fma(a, 32 + 4 * i + r,
                       [(152 + 2 * r, 153 + 2 * r), (160 + 2 * r, 161 + 2 * r)],
                       [112 + 2 * i, 113 + 2 * i])
    a("v_lshlrev_b32 v24, 9, v29")
    a("v_lshl_add_u32 v24, v28, 5, v24")
    a(f"ds_write_b128 v24, v[152:155] offset:{5120}")
    a(f"ds_write_b128 v24, v[156:159] offset:{5120+16}")
    a(f"ds_write_b128 v24, v[160:163] offset:{5120+256}")
    a(f"ds_write_b128 v24, v[164:167] offset:{5120+256+16}")
    a("s_waitcnt lgkmcnt(0)")
    a("s_barrier")
    a("v_cmp_gt_u32 vcc, 128, v0")
    a("s_and_saveexec_b64 s[22:23], vcc")
    a("s_cbranch_execz kq_done")
    a("v_lshlrev_b32 v24, 2, v0")
    for rg in range(32):
        a(f"ds_read_b32 v{32+rg}, v24 offset:{5120+rg*512}")
    a("s_waitcnt lgkmcnt(0)")
    a("v_add_f32 v25, v32, v33")
    for rg in range(2, 32):
        a(f"v_add_f32 v25, v25, v{32+rg}")
    a("v_cvt_pk_bf16_f32 v25, v25, v25")
    a("v_mul_u32_u24 v26, 12288, v2")
    a("v_lshl_add_u32 v26, v1, 1, v26")
    a("s_lshl_b32 s20, s2, 7")
    a(f"buffer_store_short v25, v26, s[16:19], s20 offen offset:{Q_OFF}")
    a.label("kq_done")
    a("s_endpgm")
    return name, 168


def k_a(a):
    name = "ka_kernel"
    kernel_header(a, name)
    a("s_cmp_ge_u32 s2, 512")
    a("s_cbranch_scc1 ka_done")
    load_srds(a, [("k", 8), ("v", 12), ("ws", 16)])
    prologue_ids(a)
    a("s_lshr_b32 s20, s2, 3")
    a("s_and_b32 s21, s2, 7")
    a("v_and_b32 v6, 15, v1")
    a("v_lshrrev_b32 v7, 4, v1")
    a("v_readfirstlane_b32 s33, v2")
    a("s_mul_i32 s22, s20, 384")
    a("v_lshlrev_b32 v8, 4, v7")
    Q = 64
    for j in range(6):
        a(f"buffer_load_dwordx4 v[{Q+4*j}:{Q+4*j+3}], v8, s[16:19], s22 offen offset:{Q_OFF + j*64}")
    a("v_mul_u32_u24 v10, 24576, v2")
    for i in range(6):
        a(f"v_add_u32 v11, {4*i}, v7")
        a("v_mul_u32_u24 v11, 0x56, v11")
        a("v_lshrrev_b32 v11, 8, v11")
        a("v_and_b32 v11, 3, v11")
        a("v_lshlrev_b32 v11, 1, v11")
        a("v_xor_b32 v11, v11, v1")
        a(f"v_lshl_add_u32 v{16+i}, v11, 4, v10")
    a("v_mul_u32_u24 v12, 18432, v2")
    a("v_lshrrev_b32 v13, 1, v6")
    a("v_and_b32 v13, 3, v13")
    a("v_lshlrev_b32 v13, 1, v13")
    a("v_mul_u32_u24 v14, 24, v6")
    a("v_add_u32 v14, v14, v7")
    for m in range(6):
        a(f"v_add_u32 v11, {4*m}, v14")
        a("v_xor_b32 v11, v11, v13")
        a(f"v_lshl_add_u32 v{24+m}, v11, 4, v12")
    a("s_mul_i32 s24, s20, 3145728")
    a("s_mul_i32 s25, s21, 98304")
    a("s_add_u32 s24, s24, s25")
    a("s_add_u32 s24, s24, 2359296")
    a("s_mul_i32 s34, s33, 18432")

    def dma(tile):
        srd = 8 if tile < 4 else 12
        t = tile % 4
        slot = tile % 3
        a(f"s_add_u32 s26, s34, {slot*6144}")
        a("s_mov_b32 m0, s26")
        a(f"s_add_u32 s25, s24, {t*6144}")
        for i in range(4):
            a(f"buffer_load_dwordx4 v{16+i}, s[{srd}:{srd+3}], s25 offen offset:{i*1024} nt lds")
        a(f"s_add_u32 s26, s34, {slot*6144+4096}")
        a("s_mov_b32 m0, s26")
        a(f"s_add_u32 s25, s24, {t*6144+4096}")
        for i in range(4, 6):
            a(f"buffer_load_dwordx4 v{16+i}, s[{srd}:{srd+3}], s25 offen offset:{(i-4)*1024} nt lds")

    for t in range(3):
        dma(t)
    TB = 96
    D = 32
    ACC = 120
    a(f"s_mov_b32 s28, {f32hex(SCALE)}")
    a(f"s_mov_b32 s29, {f32hex(LOG2E)}")
    for tile in range(8):
        a(f"s_waitcnt vmcnt({12 if tile <= 5 else (6 if tile == 6 else 0)})")
        slot = tile % 3
        for m in range(6):
            a(f"ds_read_b128 v[{TB+4*m}:{TB+4*m+3}], v{24+m} offset:{slot*6144}")
        a("s_waitcnt lgkmcnt(0)")
        if tile + 3 < 8:
            dma(tile + 3)
        if tile < 4:
            t = tile
            for j in range(6):
                c = "0" if j == 0 else f"v[{D+4*t}:{D+4*t+3}]"
                a(f"v_mfma_f32_16x16x32_bf16 v[{D+4*t}:{D+4*t+3}], v[{Q+4*j}:{Q+4*j+3}], v[{TB+4*j}:{TB+4*j+3}], {c}")
            if t == 3:
                a("s_nop 7")
                a("s_nop 1")
                for tt in range(4):
                    s_ = D + 4 * tt
                    bf16r(a, s_, s_)
                    a(f"v_mul_f32 v{s_}, s28, v{s_}")
                    bf16r(a, s_, s_)
                a(f"v_max_f32 v11, v{D}, v{D+4}")
                a(f"v_max3_f32 v11, v11, v{D+8}, v{D+12}")
                for r in (1, 2, 4, 8):
                    a("s_nop 1")
                    a(f"v_max_f32_dpp v11, v11, v11 row_ror:{r} row_mask:0xf bank_mask:0xf")
                for tt in range(4):
                    s_ = D + 4 * tt
                    a(f"v_sub_f32 v{s_}, v{s_}, v11")
                    a(f"v_mul_f32 v{s_}, s29, v{s_}")
                    a(f"v_exp_f32 v{s_}, v{s_}")
                a("s_nop 0")
                a(f"v_add_f32 v12, v{D}, v{D+4}")
                a(f"v_add_f32 v12, v12, v{D+8}")
                a(f"v_add_f32 v12, v12, v{D+12}")
            else:
                a("s_nop 3")
        else:
            t = tile - 4
            p = D + 4 * t
            for r in range(24):
                w = TB + r
                a(f"v_lshlrev_b32 v4, 16, v{w}")
                a(f"v_and_b32 v5, 0xffff0000, v{w}")
                if t == 0:
                    a(f"v_mul_f32 v{ACC+2*r}, v{p}, v4")
                    a(f"v_mul_f32 v{ACC+2*r+1}, v{p}, v5")
                else:
                    a(f"v_fmac_f32 v{ACC+2*r}, v{p}, v4")
                    a(f"v_fmac_f32 v{ACC+2*r+1}, v{p}, v5")
    regs = list(range(ACC, ACC + 48)) + [12]
    for r in (1, 2, 4, 8):
        a("s_nop 1")
        for x in regs:
            a(f"v_add_f32_dpp v{x}, v{x}, v{x} row_ror:{r} row_mask:0xf bank_mask:0xf")
    a("v_mul_u32_u24 v13, 18432, v2")
    a("v_lshl_add_u32 v14, v7, 5, v13")
    a("v_cmp_eq_u32 vcc, 0, v6")
    a("s_and_saveexec_b64 s[30:31], vcc")
    for j in range(6):
        a(f"ds_write_b128 v14, v[{ACC+8*j}:{ACC+8*j+3}] offset:{j*128}")
        a(f"ds_write_b128 v14, v[{ACC+8*j+4}:{ACC+8*j+7}] offset:{j*128+16}")
    a("v_mov_b32 v18, v11")
    a("v_mov_b32 v19, v12")
    a("ds_write_b64 v13, v[18:19] offset:768")
    a("s_mov_b64 exec, s[30:31]")
    a("s_waitcnt lgkmcnt(0)")
    a("s_barrier")
    a("v_lshlrev_b32 v17, 2, v0")
    a("v_mov_b32 v18, 0")
    for w in range(4):
        a(f"ds_read_b64 v[{20+2*w}:{21+2*w}], v18 offset:{w*18432+768}")
        a(f"ds_read_b32 v{30+w}, v17 offset:{w*18432}")
    a("s_waitcnt lgkmcnt(0)")
    a("v_max_f32 v34, v20, v22")
    a("v_max3_f32 v34, v34, v24, v26")
    for w in range(4):
        a(f"v_sub_f32 v{20+2*w}, v{20+2*w}, v34")
        a(f"v_mul_f32 v{20+2*w}, s29, v{20+2*w}")
        a(f"v_exp_f32 v{20+2*w}, v{20+2*w}")
    a("s_nop 0")
    a("v_mul_f32 v35, v20, v21")
    a("v_mul_f32 v36, v20, v30")
    for w in range(1, 4):
        a(f"v_fmac_f32 v35, v{20+2*w}, v{21+2*w}")
        a(f"v_fmac_f32 v36, v{20+2*w}, v{30+w}")
    a("v_cmp_eq_u32 vcc, 192, v0")
    a("s_nop 1")
    a("v_cndmask_b32 v36, v36, v34, vcc")
    a("v_cmp_eq_u32 vcc, 193, v0")
    a("s_nop 1")
    a("v_cndmask_b32 v36, v36, v35, vcc")
    a("v_cmp_gt_u32 vcc, 194, v0")
    a("s_and_saveexec_b64 s[30:31], vcc")
    a("s_cbranch_execz ka_done")
    a("s_lshl_b32 s22, s2, 10")
    a(f"s_add_u32 s22, s22, {PART_OFF}")
    a("buffer_store_dword v36, v17, s[16:19], s22 offen")
    a.label("ka_done")
    a("s_endpgm")
    return name, 168


def k_b(a):
    name = "kb_kernel"
    kernel_header(a, name)
    a("s_cmp_ge_u32 s2, 320")
    a("s_cbranch_scc1 kb_done")
    load_srds(a, [("wo", 12), ("ws", 16)])
    prologue_ids(a)
    a("s_and_b32 s20, s2, 31")
    a("s_lshr_b32 s21, s2, 5")
    a("v_lshlrev_b32 v6, 2, v0")
    a("v_mov_b32 v7, 768")
    a("s_lshl_b32 s22, s20, 13")
    a(f"s_add_u32 s22, s22, {PART_OFF}")
    a("s_add_u32 s23, s22, 262144")
    for b in range(2):
        for s in range(NSPLIT):
            a(f"buffer_load_dword v{64+b*8+s}, v6, s[16:19], s{22+b} offen offset:{s*1024}" if s < 4 else
              f"buffer_load_dword v{64+b*8+s}, v6, s[16:19], s{24+b} offen offset:{(s-4)*1024}")
            a(f"buffer_load_dwordx2 v[{80+(b*8+s)*2}:{81+(b*8+s)*2}], v7, s[16:19], s{22+b} offen offset:{s*1024}" if s < 4 else
              f"buffer_load_dwordx2 v[{80+(b*8+s)*2}:{81+(b*8+s)*2}], v7, s[16:19], s{24+b} offen offset:{(s-4)*1024}")
            if s == 0 and b == 0:
                a("s_add_u32 s24, s22, 4096")
                a("s_add_u32 s25, s23, 4096")
    a("v_and_b32 v28, 7, v0")
    a("v_lshrrev_b32 v29, 3, v0")
    a("v_mul_u32_u24 v30, 1280, v29")
    a("v_lshl_add_u32 v30, v28, 4, v30")
    a("s_mul_i32 s26, s20, 245760")
    a("s_lshl_b32 s27, s21, 7")
    a("s_add_u32 s26, s26, s27")
    for i in range(6):
        a(f"buffer_load_dwordx4 v[{32+4*i}:{35+4*i}], v30, s[12:15], s26 offen nt")
        if i < 5:
            a("s_add_u32 s26, s26, 40960")
    a(f"s_mov_b32 s29, {f32hex(LOG2E)}")
    a("s_waitcnt vmcnt(6)")
    for b in range(2):
        M = [80 + (b * 8 + s) * 2 for s in range(8)]
        O = [64 + b * 8 + s for s in range(8)]
        a(f"v_max_f32 v8, v{M[0]}, v{M[1]}")
        for s in range(2, 8, 2):
            a(f"v_max3_f32 v8, v8, v{M[s]}, v{M[s+1]}")
        for s in range(8):
            a(f"v_sub_f32 v{M[s]}, v{M[s]}, v8")
            a(f"v_mul_f32 v{M[s]}, s29, v{M[s]}")
            a(f"v_exp_f32 v{M[s]}, v{M[s]}")
        a("s_nop 0")
        a(f"v_mul_f32 v9, v{M[0]}, v{M[0]+1}")
        a(f"v_mul_f32 v10, v{M[0]}, v{O[0]}")
        for s in range(1, 8):
            a(f"v_fmac_f32 v9, v{M[s]}, v{M[s]+1}")
            a(f"v_fmac_f32 v10, v{M[s]}, v{O[s]}")
        a("v_rcp_f32 v9, v9")
        a("s_nop 0")
        a(f"v_mul_f32 v{12+b}, v10, v9")
        bf16r(a, 12 + b, 12 + b)
    a("v_lshlrev_b32 v11, 3, v0")
    a("v_cmp_gt_u32 vcc, 192, v0")
    a("s_and_saveexec_b64 s[30:31], vcc")
    a("ds_write_b64 v11, v[12:13]")
    a("s_mov_b64 exec, s[30:31]")
    a("s_waitcnt lgkmcnt(0)")
    a("s_barrier")
    a("v_lshlrev_b32 v24, 3, v29")
    for i in range(6):
        a(f"ds_read_b64 v[{112+2*i}:{113+2*i}], v24 offset:{i*256}")
    for r in range(152, 168):
        a(f"v_mov_b32 v{r}, 0")
    a("s_waitcnt lgkmcnt(0)")
    for i in range(6):
        a(f"s_waitcnt vmcnt({5-i})")
        for r in range(4):
            unpack_fma(a, 32 + 4 * i + r,
                       [(152 + 2 * r, 153 + 2 * r), (160 + 2 * r, 161 + 2 * r)],
                       [112 + 2 * i, 113 + 2 * i])
    a("v_lshlrev_b32 v24, 9, v29")
    a("v_lshl_add_u32 v24, v28, 5, v24")
    a(f"ds_write_b128 v24, v[152:155] offset:{2048}")
    a(f"ds_write_b128 v24, v[156:159] offset:{2048+16}")
    a(f"ds_write_b128 v24, v[160:163] offset:{2048+256}")
    a(f"ds_write_b128 v24, v[164:167] offset:{2048+256+16}")
    a("s_waitcnt lgkmcnt(0)")
    a("s_barrier")
    a("v_cmp_gt_u32 vcc, 128, v0")
    a("s_and_saveexec_b64 s[22:23], vcc")
    a("s_cbranch_execz kb_done")
    a("v_lshlrev_b32 v24, 2, v0")
    for rg in range(32):
        a(f"ds_read_b32 v{32+rg}, v24 offset:{2048+rg*512}")
    a("s_waitcnt lgkmcnt(0)")
    a("v_add_f32 v25, v32, v33")
    for rg in range(2, 32):
        a(f"v_add_f32 v25, v25, v{32+rg}")
    a("v_mul_u32_u24 v26, 2560, v2")
    a("v_lshl_add_u32 v26, v1, 2, v26")
    a("s_lshl_b32 s27, s21, 8")
    a(f"s_add_u32 s27, s27, {ACC1_OFF}")
    a("buffer_atomic_add_f32 v25, v26, s[16:19], s27 offen")
    a.label("kb_done")
    a("s_endpgm")
    return name, 168


def k_c(a):
    name = "kc_kernel"
    kernel_header(a, name)
    a("s_cmp_ge_u32 s2, 96")
    a("s_cbranch_scc1 kc_done")
    load_srds(a, [("x", 8), ("wg", 12), ("ws", 16), ("wu", 20), ("wd", 24), ("out", 28), ("dbg", 32)])
    prologue_ids(a)
    a("s_and_b32 s40, s2, 7")
    a("s_mul_i32 s40, s40, 12")
    a("s_lshr_b32 s41, s2, 3")
    a("s_add_u32 s40, s40, s41")
    a("v_and_b32 v6, 1, v2")
    a("v_mul_u32_u24 v7, 1280, v6")
    a("v_add_u32 v7, v7, v3")
    a("v_lshlrev_b32 v27, 1, v7")
    for i in range(5):
        a(f"buffer_load_dword v{8+i}, v7, s[8:11], 0 offen offset:{i*256}")
    a(f"s_mov_b32 s42, {ACC1_OFF}")
    for i in range(5):
        a(f"buffer_load_dwordx2 v[{100+2*i}:{101+2*i}], v27, s[16:19], s42 offen offset:{i*512}")
    a("v_and_b32 v28, 1, v0")
    a("v_lshrrev_b32 v29, 1, v0")
    a("v_mul_u32_u24 v30, 3072, v29")
    a("v_lshl_add_u32 v30, v28, 4, v30")
    a("s_lshl_b32 s43, s40, 5")
    for i in range(5):
        a(f"buffer_load_dwordx4 v[{32+4*i}:{35+4*i}], v30, s[12:15], s43 offen nt")
        a(f"buffer_load_dwordx4 v[{52+4*i}:{55+4*i}], v30, s[20:23], s43 offen nt")
        if i < 4:
            a("s_add_u32 s43, s43, 393216")
    a("v_mul_u32_u24 v31, 205, v0")
    a("v_lshrrev_b32 v31, 14, v31")
    a("v_mul_u32_u24 v98, 80, v31")
    a("v_sub_u32 v98, v0, v98")
    a("v_mul_u32_u24 v99, 1280, v31")
    a("v_lshl_add_u32 v99, v98, 4, v99")
    a("s_mul_i32 s43, s40, 20480")
    for i in range(6):
        a(f"buffer_load_dwordx4 v[{72+4*i}:{75+4*i}], v99, s[24:27], s43 offen nt")
        if i < 5:
            a("s_add_u32 s43, s43, 3840")
    a("s_waitcnt vmcnt(16)")
    vals = list(range(14, 24))
    H = list(range(110, 120))
    for i in range(5):
        a(f"v_lshlrev_b32 v{14+2*i}, 16, v{8+i}")
        a(f"v_and_b32 v{15+2*i}, 0xffff0000, v{8+i}")
    for e in range(10):
        bf16r(a, 100 + e, 100 + e)
        a(f"v_add_f32 v{14+e}, v{14+e}, v{100+e}")
        bf16r(a, 14 + e, 14 + e)
        a(f"v_mov_b32 v{H[e]}, v{14+e}")
    emit_ln(a, vals, 3, 24, 25, 26, 5)
    a("v_lshlrev_b32 v24, 4, v1")
    a("v_lshl_add_u32 v24, v6, 2, v24")
    for i in range(5):
        a(f"ds_write_b32 v24, v{14+2*i} offset:{i*1024}")
        a(f"ds_write_b32 v24, v{15+2*i} offset:{i*1024+8}")
    a("s_waitcnt lgkmcnt(0)")
    a("s_barrier")
    a("v_lshlrev_b32 v24, 3, v29")
    for i in range(5):
        a(f"ds_read_b64 v[{120+2*i}:{121+2*i}], v24 offset:{i*1024}")
    A = 132
    for r in range(A, A + 32):
        a(f"v_mov_b32 v{r}, 0")
    a("s_waitcnt lgkmcnt(0)")
    for i in range(5):
        for m in range(2):
            a(f"s_waitcnt vmcnt({6 + (4-i)*2 + (1-m)})")
            for r in range(4):
                base = A + m * 16
                unpack_fma(a, (32 if m == 0 else 52) + 4 * i + r,
                           [(base + 2 * r, base + 2 * r + 1), (base + 8 + 2 * r, base + 9 + 2 * r)],
                           [120 + 2 * i, 121 + 2 * i])
    RED = 5120
    a("v_lshlrev_b32 v24, 8, v29")
    a("v_lshl_add_u32 v24, v28, 5, v24")
    for mb in range(4):
        a(f"ds_write_b128 v24, v[{A+8*mb}:{A+8*mb+3}] offset:{RED+mb*64}")
        a(f"ds_write_b128 v24, v[{A+8*mb+4}:{A+8*mb+7}] offset:{RED+mb*64+16}")
    a("s_waitcnt lgkmcnt(0)")
    a("s_barrier")
    a("v_lshlrev_b32 v24, 13, v2")
    a("v_add_u32 v24, v24, v3")
    for r in range(32):
        a(f"ds_read_b32 v{A+r}, v24 offset:{RED+r*256}")
    a("s_waitcnt lgkmcnt(0)")
    a(f"v_add_f32 v25, v{A}, v{A+1}")
    for r in range(2, 32):
        a(f"v_add_f32 v25, v25, v{A+r}")
    RED2 = RED + 32768
    a("v_lshlrev_b32 v24, 2, v0")
    a(f"ds_write_b32 v24, v25 offset:{RED2}")
    a("s_waitcnt lgkmcnt(0)")
    a("s_barrier")
    GL = RED2 + 1024
    a("v_cmp_gt_u32 vcc, 36, v0")
    a("s_and_saveexec_b64 s[44:45], vcc")
    a("s_cbranch_execz kc_skipg")
    a("v_lshlrev_b32 v24, 2, v0")
    for w in range(4):
        a(f"ds_read_b32 v{A+w}, v24 offset:{RED2+w*256}")
        a(f"ds_read_b32 v{A+4+w}, v24 offset:{RED2+w*256+128}")
    a("s_waitcnt lgkmcnt(0)")
    a(f"v_add_f32 v25, v{A}, v{A+1}")
    a(f"v_add_f32 v25, v25, v{A+2}")
    a(f"v_add_f32 v25, v25, v{A+3}")
    a(f"v_add_f32 v26, v{A+4}, v{A+5}")
    a(f"v_add_f32 v26, v26, v{A+6}")
    a(f"v_add_f32 v26, v26, v{A+7}")
    bf16r(a, 25, 25)
    bf16r(a, 26, 26)
    a("v_mul_f32 v4, v25, v25")
    a("v_mul_f32 v4, v4, v25")
    a(f"v_mov_b32 v5, {f32hex(0.044715)}")
    a("v_fma_f32 v4, v4, v5, v25")
    a(f"v_mul_f32 v4, {f32hex(2.0*math.sqrt(2.0/math.pi)*LOG2E)}, v4")
    a("v_exp_f32 v4, v4")
    a("s_nop 0")
    a("v_add_f32 v4, 1.0, v4")
    a("v_rcp_f32 v4, v4")
    a("s_nop 0")
    a("v_fma_f32 v4, v4, -2.0, 2.0")
    a("v_mul_f32 v4, 0.5, v4")
    a("v_mul_f32 v4, v4, v25")
    bf16r(a, 4, 4)
    a("v_mul_f32 v4, v4, v26")
    bf16r(a, 4, 4)
    a("v_cmp_gt_u32 vcc, 32, v0")
    a("s_nop 1")
    a("v_cndmask_b32 v4, 0, v4, vcc")
    a("v_and_b32 v5, 15, v0")
    a("v_lshlrev_b32 v5, 3, v5")
    a("v_lshrrev_b32 v24, 4, v0")
    a("v_lshl_add_u32 v5, v24, 2, v5")
    a("v_lshlrev_b32 v24, 2, v0")
    a("v_cndmask_b32 v5, v24, v5, vcc")
    a(f"ds_write_b32 v5, v4 offset:{GL}")
    if DEBUG:
        a("v_lshlrev_b32 v24, 4, v0")
        a("s_lshl_b32 s47, s40, 10")
        a("s_add_u32 s47, s47, 0x80000")
        a("v_mov_b32 v6, v4")
        a("v_mov_b32 v4, v25")
        a("v_mov_b32 v5, v26")
        a("buffer_store_dwordx4 v[4:7], v24, s[16:19], s47 offen")
    a.label("kc_skipg")
    a("s_mov_b64 exec, s[44:45]")
    a("s_waitcnt lgkmcnt(0)")
    a("s_barrier")
    a("v_lshlrev_b32 v24, 3, v31")
    for i in range(6):
        a(f"ds_read_b64 v[{120+2*i}:{121+2*i}], v24 offset:{GL+i*24}")
    for r in range(A, A + 16):
        a(f"v_mov_b32 v{r}, 0")
    a("s_waitcnt lgkmcnt(0)")
    for i in range(6):
        a(f"s_waitcnt vmcnt({5-i})")
        for r in range(4):
            unpack_fma(a, 72 + 4 * i + r,
                       [(A + 2 * r, A + 2 * r + 1), (A + 8 + 2 * r, A + 9 + 2 * r)],
                       [120 + 2 * i, 121 + 2 * i])
    a("v_mul_u32_u24 v24, 5120, v31")
    a("v_lshl_add_u32 v24, v98, 5, v24")
    a("v_cmp_gt_u32 vcc, 240, v0")
    a("s_and_saveexec_b64 s[44:45], vcc")
    a(f"ds_write_b128 v24, v[{A}:{A+3}] offset:{RED}")
    a(f"ds_write_b128 v24, v[{A+4}:{A+7}] offset:{RED+16}")
    a(f"ds_write_b128 v24, v[{A+8}:{A+11}] offset:{RED+2560}")
    a(f"ds_write_b128 v24, v[{A+12}:{A+15}] offset:{RED+2560+16}")
    a("s_mov_b64 exec, s[44:45]")
    a("s_waitcnt lgkmcnt(0)")
    a("s_barrier")
    a("v_lshlrev_b32 v24, 2, v0")
    for k in range(5):
        for r in range(3):
            a(f"ds_read_b32 v{A+k*3+r}, v24 offset:{RED+r*5120+k*1024}")
    a("s_waitcnt lgkmcnt(0)")
    a(f"s_mov_b32 s42, {ACC2_OFF}")
    for k in range(5):
        a(f"v_add_f32 v{A+k*3}, v{A+k*3}, v{A+k*3+1}")
        a(f"v_add_f32 v{A+k*3}, v{A+k*3}, v{A+k*3+2}")
        if k == 4:
            a(f"s_mov_b32 s42, {ACC2_OFF+4096}")
        a(f"buffer_atomic_add_f32 v{A+k*3}, v24, s[16:19], s42 offen offset:{(k%4)*1024}")
    a("s_waitcnt vmcnt(0)")
    a("s_barrier")
    a("v_cmp_eq_u32 vcc, 0, v0")
    a("s_and_saveexec_b64 s[44:45], vcc")
    a("s_cbranch_execz kc_nocnt")
    a("v_mov_b32 v4, 1")
    a("v_mov_b32 v5, 0")
    a("buffer_atomic_add v4, v5, s[32:35], 0 offen sc0")
    a("s_waitcnt vmcnt(0)")
    a(f"ds_write_b32 v5, v4 offset:{GL}")
    a.label("kc_nocnt")
    a("s_mov_b64 exec, s[44:45]")
    a("s_waitcnt lgkmcnt(0)")
    a("s_barrier")
    a("v_mov_b32 v5, 0")
    a(f"ds_read_b32 v4, v5 offset:{GL}")
    a("s_waitcnt lgkmcnt(0)")
    a("v_readfirstlane_b32 s46, v4")
    a("s_cmp_lg_u32 s46, 95")
    a("s_cbranch_scc1 kc_done")
    a("v_cmp_gt_u32 vcc, 128, v0")
    a("s_and_saveexec_b64 s[44:45], vcc")
    a("s_cbranch_execz kc_done")
    a(f"s_mov_b32 s42, {ACC2_OFF}")
    for i in range(5):
        a(f"buffer_load_dwordx2 v[{100+2*i}:{101+2*i}], v27, s[16:19], s42 offen offset:{i*512} sc0 sc1")
    a("s_waitcnt vmcnt(0)")
    for e in range(10):
        bf16r(a, 100 + e, 100 + e)
        a(f"v_add_f32 v{100+e}, v{100+e}, v{H[e]}")
    for i in range(5):
        a(f"v_cvt_pk_bf16_f32 v{8+i}, v{100+2*i}, v{101+2*i}")
        a(f"buffer_store_dword v{8+i}, v7, s[28:31], 0 offen offset:{i*256}")
    a.label("kc_done")
    a("s_endpgm")
    return name, 168


def main(out):
    a = Asm()
    hdr = open("cdna_kernels/" + NAME + ".s.ref").read().split("; Override launch geometry")[0]
    launches = [
        ("kq_kernel", 96, 21504),
        ("ka_kernel", 512, 73728),
        ("kb_kernel", 320, 2048 + 16384),
        ("kc_kernel", 96, 5120 + 32768 + 1024 + 256),
    ]
    txt = hdr
    for k, g, l in launches:
        txt += f"; @launch kernel={k} grid=({g},1,1) block=(256,1,1) lds={l}\n"
    txt += '.amdgcn_target "amdgcn-amd-amdhsa--gfx950"\n.text\n'
    descs = []
    for fn in (k_q, k_a, k_b, k_c):
        n, v = fn(a)
        descs.append(kernel_desc(n, v))
    txt += a.text()
    txt += '.section .rodata,"a"\n.p2align 6\n'
    for d in descs:
        txt += ".p2align 6\n" + d
    open(out, "w").write(txt)


if __name__ == "__main__":
    main(sys.argv[1] if len(sys.argv) > 1 else "cdna_kernels/" + NAME + ".s")
```

```python
import math
import sys
from common import *

NAME = "sequential_preLN__sliding_block_cached__geglu_ffn__decode"
Q_OFF = 0
ACC1_OFF = 32768
ACC2_OFF = 40960
PART_OFF = 65536
NSPLIT = 8
DEBUG = False
LOG2E = math.log2(math.e)
SCALE = 192 ** -0.5


def f32hex(x):
    import struct
    return "0x%08x" % struct.unpack("<I", struct.pack("<f", x))[0]


def unpack_fma(a, wreg, accs, xs):
    a(f"v_lshlrev_b32 v4, 16, v{wreg}")
    a(f"v_and_b32 v5, 0xffff0000, v{wreg}")
    for (lo, hi), x in zip(accs, xs):
        a(f"v_fmac_f32 v{lo}, v{x}, v4")
        a(f"v_fmac_f32 v{hi}, v{x}, v5")


def prologue_ids(a):
    a("v_and_b32 v1, 63, v0")
    a("v_lshrrev_b32 v2, 6, v0")
    a("v_lshlrev_b32 v3, 2, v1")


def k_q(a):
    name = "kq_kernel"
    kernel_header(a, name)
    a("s_cmp_ge_u32 s2, 96")
    a("s_cbranch_scc1 kq_done")
    load_srds(a, [("x", 8), ("wq", 12), ("ws", 16)])
    prologue_ids(a)
    a("v_and_b32 v6, 1, v2")
    a("v_mul_u32_u24 v7, 1280, v6")
    a("v_add_u32 v7, v7, v3")
    for i in range(5):
        a(f"buffer_load_dword v{8+i}, v7, s[8:11], 0 offen offset:{i*256}")
    a("v_and_b32 v28, 7, v0")
    a("v_lshrrev_b32 v29, 3, v0")
    a("s_movk_i32 s21, 12288")
    a("v_mul_lo_u32 v30, v29, s21")
    a("v_lshl_add_u32 v30, v28, 4, v30")
    a("s_lshl_b32 s20, s2, 7")
    for i in range(20):
        a(f"buffer_load_dwordx4 v[{32+4*i}:{35+4*i}], v30, s[12:15], s20 offen nt")
        if i < 19:
            a("s_add_u32 s20, s20, 393216")
    a("s_cmp_lg_u32 s2, 0")
    a("s_cbranch_scc1 kq_nozero")
    a("v_mov_b32 v152, 0")
    a("v_mov_b32 v153, 0")
    a("v_mov_b32 v154, 0")
    a("v_mov_b32 v155, 0")
    a("v_lshlrev_b32 v156, 4, v0")
    a(f"v_add_u32 v156, {ACC1_OFF}, v156")
    for i in range(4):
        a(f"buffer_store_dwordx4 v[152:155], v156, s[16:19], 0 offen")
        if i < 3:
            a("v_add_u32 v156, 4096, v156")
    a("s_waitcnt vmcnt(0)")
    a.label("kq_nozero")
    a("s_waitcnt vmcnt(20)")
    vals = list(range(14, 24))
    for i in range(5):
        a(f"v_lshlrev_b32 v{14+2*i}, 16, v{8+i}")
        a(f"v_and_b32 v{15+2*i}, 0xffff0000, v{8+i}")
    emit_ln(a, vals, 3, 24, 25, 26, 27)
    a("v_lshlrev_b32 v24, 4, v1")
    a("v_lshl_add_u32 v24, v6, 2, v24")
    for i in range(5):
        a(f"ds_write_b32 v24, v{14+2*i} offset:{i*1024}")
        a(f"ds_write_b32 v24, v{15+2*i} offset:{i*1024+8}")
    a("s_waitcnt lgkmcnt(0)")
    a("s_barrier")
    a("v_lshlrev_b32 v24, 3, v29")
    for i in range(20):
        a(f"ds_read_b64 v[{112+2*i}:{113+2*i}], v24 offset:{i*256}")
    for r in range(152, 168):
        a(f"v_mov_b32 v{r}, 0")
    a("s_waitcnt lgkmcnt(0)")
    for i in range(20):
        a(f"s_waitcnt vmcnt({19-i})")
        for r in range(4):
            unpack_fma(a, 32 + 4 * i + r,
                       [(152 + 2 * r, 153 + 2 * r), (160 + 2 * r, 161 + 2 * r)],
                       [112 + 2 * i, 113 + 2 * i])
    a("v_lshlrev_b32 v24, 9, v29")
    a("v_lshl_add_u32 v24, v28, 5, v24")
    a(f"ds_write_b128 v24, v[152:155] offset:{5120}")
    a(f"ds_write_b128 v24, v[156:159] offset:{5120+16}")
    a(f"ds_write_b128 v24, v[160:163] offset:{5120+256}")
    a(f"ds_write_b128 v24, v[164:167] offset:{5120+256+16}")
    a("s_waitcnt lgkmcnt(0)")
    a("s_barrier")
    a("v_cmp_gt_u32 vcc, 128, v0")
    a("s_and_saveexec_b64 s[22:23], vcc")
    a("s_cbranch_execz kq_done")
    a("v_lshlrev_b32 v24, 2, v0")
    for rg in range(32):
        a(f"ds_read_b32 v{32+rg}, v24 offset:{5120+rg*512}")
    a("s_waitcnt lgkmcnt(0)")
    a("v_add_f32 v25, v32, v33")
    for rg in range(2, 32):
        a(f"v_add_f32 v25, v25, v{32+rg}")
    a("v_cvt_pk_bf16_f32 v25, v25, v25")
    a("v_mul_u32_u24 v26, 12288, v2")
    a("v_lshl_add_u32 v26, v1, 1, v26")
    a("s_lshl_b32 s20, s2, 7")
    a(f"buffer_store_short v25, v26, s[16:19], s20 offen offset:{Q_OFF}")
    a.label("kq_done")
    a("s_endpgm")
    return name, 168


def k_a(a):
    name = "ka_kernel"
    kernel_header(a, name)
    a("s_cmp_ge_u32 s2, 256")
    a("s_cbranch_scc1 ka_done")
    load_srds(a, [("k", 8), ("v", 12), ("ws", 16), ("x", 36), ("wq", 40)])
    prologue_ids(a)
    a("v_and_b32 v6, 15, v1")
    a("v_lshrrev_b32 v7, 4, v1")
    a("v_readfirstlane_b32 s33, v2")
    a("s_and_b32 s20, s2, 7")
    a("s_lshl_b32 s20, s20, 2")
    a("s_lshr_b32 s21, s2, 3")
    a("s_and_b32 s22, s21, 3")
    a("s_add_u32 s20, s20, s22")
    a("s_lshr_b32 s21, s2, 5")
    AUX = 147456
    QL = 12288
    a("v_and_b32 v8, 1, v2")
    a("v_mul_u32_u24 v9, 1280, v8")
    a("v_add_u32 v9, v9, v3")
    for i in range(5):
        a(f"buffer_load_dword v{48+i}, v9, s[36:39], 0 offen offset:{i*256}")
    for i in range(6):
        a(f"v_add_u32 v11, {4*i}, v7")
        a("v_mul_u32_u24 v11, 0x56, v11")
        a("v_lshrrev_b32 v11, 8, v11")
        a("v_and_b32 v11, 3, v11")
        a("v_lshlrev_b32 v11, 1, v11")
        a("v_xor_b32 v11, v11, v1")
        a(f"v_lshlrev_b32 v{16+i}, 4, v11")
    a("s_lshr_b32 s22, s33, 2")
    a("s_and_b32 s23, s33, 3")
    a("s_lshl_b32 s27, s22, 5")
    a("s_add_u32 s27, s27, s20")
    a("s_mul_i32 s24, s27, 3145728")
    a("s_mul_i32 s25, s21, 98304")
    a("s_add_u32 s24, s24, s25")
    a("s_mul_i32 s25, s23, 24576")
    a("s_add_u32 s24, s24, s25")
    a("s_add_u32 s24, s24, 2359296")
    a("s_mul_i32 s34, s33, 18432")

    def dma(tile):
        srd = 8 if tile < 4 else 12
        t = tile % 4
        slot = tile % 3
        a(f"s_add_u32 s26, s34, {slot*6144}")
        a("s_mov_b32 m0, s26")
        a(f"s_add_u32 s25, s24, {t*6144}")
        for i in range(4):
            a(f"buffer_load_dwordx4 v{16+i}, s[{srd}:{srd+3}], s25 offen offset:{i*1024} nt lds")
        a(f"s_add_u32 s26, s34, {slot*6144+4096}")
        a("s_mov_b32 m0, s26")
        a(f"s_add_u32 s25, s24, {t*6144+4096}")
        for i in range(4, 6):
            a(f"buffer_load_dwordx4 v{16+i}, s[{srd}:{srd+3}], s25 offen offset:{(i-4)*1024} nt lds")

    for t in range(3):
        dma(t)
    a("v_lshrrev_b32 v10, 5, v1")
    a("v_and_b32 v11, 31, v1")
    a("v_lshl_add_u32 v12, v2, 1, v10")
    a("s_movk_i32 s30, 12288")
    a("v_mul_lo_u32 v13, v12, s30")
    a("v_mul_u32_u24 v14, 12, v11")
    a("v_add_u32 v13, v13, v14")
    a("s_mul_i32 s31, s20, 384")
    WQ = 88
    for i in range(40):
        a(f"buffer_load_dwordx3 v[{WQ+4*i}:{WQ+4*i+2}], v13, s[40:43], s31 offen")
        if i < 39:
            a("s_add_u32 s31, s31, 196608")
    a("v_mul_u32_u24 v15, 18432, v2")
    a("v_lshrrev_b32 v22, 1, v6")
    a("v_and_b32 v22, 3, v22")
    a("v_lshlrev_b32 v22, 1, v22")
    a("v_mul_u32_u24 v23, 24, v6")
    a("v_add_u32 v23, v23, v7")
    for m in range(6):
        a(f"v_add_u32 v30, {4*m}, v23")
        a("v_xor_b32 v30, v30, v22")
        a(f"v_lshl_add_u32 v{24+m}, v30, 4, v15")
    a("s_waitcnt vmcnt(58)")
    vals = list(range(54, 64))
    for i in range(5):
        a(f"v_lshlrev_b32 v{54+2*i}, 16, v{48+i}")
        a(f"v_and_b32 v{55+2*i}, 0xffff0000, v{48+i}")
    emit_ln(a, vals, 3, 30, 31, 32, 33)
    a("v_lshlrev_b32 v30, 4, v1")
    a("v_lshl_add_u32 v30, v8, 2, v30")
    a(f"v_add_u32 v30, {AUX}, v30")
    for i in range(5):
        a(f"ds_write_b32 v30, v{54+2*i} offset:{i*1024}")
        a(f"ds_write_b32 v30, v{55+2*i} offset:{i*1024+8}")
    a("s_waitcnt lgkmcnt(0)")
    a("s_barrier")
    a("v_lshlrev_b32 v31, 3, v12")
    a(f"v_add_u32 v31, {AUX}, v31")
    for r in range(32, 44):
        a(f"v_mov_b32 v{r}, 0")
    XN = 48
    for bt in range(4):
        for ii in range(10):
            i = bt * 10 + ii
            a(f"ds_read_b64 v[{XN+2*ii}:{XN+2*ii+1}], v31 offset:{i*128}")
        a("s_waitcnt lgkmcnt(0)")
        for ii in range(10):
            i = bt * 10 + ii
            a(f"s_waitcnt vmcnt({39-i})")
            for r in range(3):
                unpack_fma(a, WQ + 4 * i + r, [(32 + 2 * r, 33 + 2 * r), (38 + 2 * r, 39 + 2 * r)],
                           [XN + 2 * ii, XN + 2 * ii + 1])
    for r in range(12):
        a(f"v_mov_b32 v{48+r}, v{32+r}")
    a("s_nop 1")
    for r in range(12):
        a(f"v_permlane32_swap_b32 v{32+r}, v{48+r}")
    a("s_nop 1")
    for r in range(12):
        a(f"v_add_f32 v{32+r}, v{32+r}, v{48+r}")
    a("s_barrier")
    a("v_mul_u32_u24 v30, 1536, v2")
    a("v_mul_u32_u24 v31, 24, v11")
    a("v_add3_u32 v30, v30, v31, s35" if False else "v_add_u32 v30, v30, v31")
    a(f"v_add_u32 v30, {AUX}, v30")
    a("v_cmp_gt_u32 vcc, 32, v1")
    a("s_and_saveexec_b64 s[44:45], vcc")
    for b in range(2):
        for k in range(3):
            a(f"ds_write_b64 v30, v[{32+6*b+2*k}:{33+6*b+2*k}] offset:{b*768+k*8}")
    a("s_mov_b64 exec, s[44:45]")
    a("s_waitcnt lgkmcnt(0)")
    a("s_barrier")
    a("v_cmp_gt_u32 vcc, 384, v0")
    a("s_and_saveexec_b64 s[44:45], vcc")
    a("s_cbranch_execz ka_noq")
    a("v_lshlrev_b32 v30, 2, v0")
    a(f"v_add_u32 v30, {AUX}, v30")
    for w in range(8):
        a(f"ds_read_b32 v{32+w}, v30 offset:{w*1536}")
    a("s_waitcnt lgkmcnt(0)")
    a("v_add_f32 v32, v32, v33")
    for w in range(2, 8):
        a(f"v_add_f32 v32, v32, v{32+w}")
    a("v_cvt_pk_bf16_f32 v32, v32, v32")
    a("v_lshlrev_b32 v30, 1, v0")
    a(f"v_add_u32 v30, {AUX+QL}, v30")
    a("ds_write_b16 v30, v32")
    a.label("ka_noq")
    a("s_mov_b64 exec, s[44:45]")
    a("s_waitcnt lgkmcnt(0)")
    a("s_barrier")
    Q = 64
    a("v_lshrrev_b32 v30, 2, v2")
    a("v_mul_u32_u24 v30, 384, v30")
    a("v_lshl_add_u32 v30, v7, 4, v30")
    a(f"v_add_u32 v30, {AUX+QL}, v30")
    for j in range(6):
        a(f"ds_read_b128 v[{Q+4*j}:{Q+4*j+3}], v30 offset:{j*64}")
    a("s_cmp_lg_u32 s2, 0")
    a("s_cbranch_scc1 ka_nozero")
    for r in range(32, 36):
        a(f"v_mov_b32 v{r}, 0")
    a("v_lshlrev_b32 v36, 4, v0")
    a(f"v_add_u32 v36, {ACC1_OFF}, v36")
    a("buffer_store_dwordx4 v[32:35], v36, s[16:19], 0 offen")
    a("v_add_u32 v36, 8192, v36")
    a("buffer_store_dwordx4 v[32:35], v36, s[16:19], 0 offen")
    a("s_waitcnt vmcnt(0)")
    a.label("ka_nozero")
    a("s_waitcnt lgkmcnt(0)")
    TB = 96
    D = 32
    ACC = 120
    a(f"s_mov_b32 s28, {f32hex(SCALE)}")
    a(f"s_mov_b32 s29, {f32hex(LOG2E)}")
    for tile in range(8):
        a(f"s_waitcnt vmcnt({12 if tile <= 5 else (6 if tile == 6 else 0)})")
        slot = tile % 3
        for m in range(6):
            a(f"ds_read_b128 v[{TB+4*m}:{TB+4*m+3}], v{24+m} offset:{slot*6144}")
        a("s_waitcnt lgkmcnt(0)")
        if tile + 3 < 8:
            dma(tile + 3)
        if tile < 4:
            t = tile
            for j in range(6):
                c = "0" if j == 0 else f"v[{D+4*t}:{D+4*t+3}]"
                a(f"v_mfma_f32_16x16x32_bf16 v[{D+4*t}:{D+4*t+3}], v[{Q+4*j}:{Q+4*j+3}], v[{TB+4*j}:{TB+4*j+3}], {c}")
            if t == 3:
                a("s_nop 7")
                a("s_nop 1")
                for tt in range(4):
                    s_ = D + 4 * tt
                    bf16r(a, s_, s_)
                    a(f"v_mul_f32 v{s_}, s28, v{s_}")
                    bf16r(a, s_, s_)
                a(f"v_max_f32 v11, v{D}, v{D+4}")
                a(f"v_max3_f32 v11, v11, v{D+8}, v{D+12}")
                for r in (1, 2, 4, 8):
                    a("s_nop 1")
                    a(f"v_max_f32_dpp v11, v11, v11 row_ror:{r} row_mask:0xf bank_mask:0xf")
                for tt in range(4):
                    s_ = D + 4 * tt
                    a(f"v_sub_f32 v{s_}, v{s_}, v11")
                    a(f"v_mul_f32 v{s_}, s29, v{s_}")
                    a(f"v_exp_f32 v{s_}, v{s_}")
                a("s_nop 0")
                a(f"v_add_f32 v12, v{D}, v{D+4}")
                a(f"v_add_f32 v12, v12, v{D+8}")
                a(f"v_add_f32 v12, v12, v{D+12}")
            else:
                a("s_nop 3")
        else:
            t = tile - 4
            p = D + 4 * t
            for r in range(24):
                w = TB + r
                a(f"v_lshlrev_b32 v4, 16, v{w}")
                a(f"v_and_b32 v5, 0xffff0000, v{w}")
                if t == 0:
                    a(f"v_mul_f32 v{ACC+2*r}, v{p}, v4")
                    a(f"v_mul_f32 v{ACC+2*r+1}, v{p}, v5")
                else:
                    a(f"v_fmac_f32 v{ACC+2*r}, v{p}, v4")
                    a(f"v_fmac_f32 v{ACC+2*r+1}, v{p}, v5")
    regs = list(range(ACC, ACC + 48)) + [12]
    for r in (1, 2, 4, 8):
        a("s_nop 1")
        for x in regs:
            a(f"v_add_f32_dpp v{x}, v{x}, v{x} row_ror:{r} row_mask:0xf bank_mask:0xf")
    a("v_mul_u32_u24 v13, 18432, v2")
    a("v_lshl_add_u32 v14, v7, 5, v13")
    a("v_cmp_eq_u32 vcc, 0, v6")
    a("s_and_saveexec_b64 s[30:31], vcc")
    for j in range(6):
        a(f"ds_write_b128 v14, v[{ACC+8*j}:{ACC+8*j+3}] offset:{j*128}")
        a(f"ds_write_b128 v14, v[{ACC+8*j+4}:{ACC+8*j+7}] offset:{j*128+16}")
    a("v_mov_b32 v18, v11")
    a("v_mov_b32 v19, v12")
    a("ds_write_b64 v13, v[18:19] offset:768")
    a("s_mov_b64 exec, s[30:31]")
    a("s_waitcnt lgkmcnt(0)")
    a("s_barrier")
    a("v_and_b32 v16, 255, v0")
    a("v_lshrrev_b32 v15, 8, v0")
    a("v_mul_u32_u24 v18, 73728, v15")
    a("v_lshl_add_u32 v17, v16, 2, v18")
    for w in range(4):
        a(f"ds_read_b64 v[{20+2*w}:{21+2*w}], v18 offset:{w*18432+768}")
        a(f"ds_read_b32 v{30+w}, v17 offset:{w*18432}")
    a("s_waitcnt lgkmcnt(0)")
    a("v_max_f32 v34, v20, v22")
    a("v_max3_f32 v34, v34, v24, v26")
    for w in range(4):
        a(f"v_sub_f32 v{20+2*w}, v{20+2*w}, v34")
        a(f"v_mul_f32 v{20+2*w}, s29, v{20+2*w}")
        a(f"v_exp_f32 v{20+2*w}, v{20+2*w}")
    a("s_nop 0")
    a("v_mul_f32 v35, v20, v21")
    a("v_mul_f32 v36, v20, v30")
    for w in range(1, 4):
        a(f"v_fmac_f32 v35, v{20+2*w}, v{21+2*w}")
        a(f"v_fmac_f32 v36, v{20+2*w}, v{30+w}")
    a("v_cmp_eq_u32 vcc, 192, v16")
    a("s_nop 1")
    a("v_cndmask_b32 v36, v36, v34, vcc")
    a("v_cmp_eq_u32 vcc, 193, v16")
    a("s_nop 1")
    a("v_cndmask_b32 v36, v36, v35, vcc")
    a("v_cmp_gt_u32 vcc, 194, v16")
    a("s_and_saveexec_b64 s[30:31], vcc")
    a("s_cbranch_execz ka_done")
    a("s_lshl_b32 s22, s20, 3")
    a("s_add_u32 s22, s22, s21")
    a("s_lshl_b32 s22, s22, 10")
    a(f"s_add_u32 s22, s22, {PART_OFF}")
    a("v_lshlrev_b32 v17, 18, v15")
    a("v_lshl_add_u32 v17, v16, 2, v17")
    a("buffer_store_dword v36, v17, s[16:19], s22 offen")
    a.label("ka_done")
    a("s_endpgm")
    return name, 248


def k_b(a):
    name = "kb_kernel"
    kernel_header(a, name)
    a("s_cmp_ge_u32 s2, 320")
    a("s_cbranch_scc1 kb_done")
    load_srds(a, [("wo", 12), ("ws", 16)])
    prologue_ids(a)
    a("s_and_b32 s20, s2, 31")
    a("s_lshr_b32 s21, s2, 5")
    a("v_lshlrev_b32 v6, 2, v0")
    a("v_mov_b32 v7, 768")
    a("s_lshl_b32 s22, s20, 13")
    a(f"s_add_u32 s22, s22, {PART_OFF}")
    a("s_add_u32 s23, s22, 262144")
    for b in range(2):
        for s in range(NSPLIT):
            a(f"buffer_load_dword v{64+b*8+s}, v6, s[16:19], s{22+b} offen offset:{s*1024}" if s < 4 else
              f"buffer_load_dword v{64+b*8+s}, v6, s[16:19], s{24+b} offen offset:{(s-4)*1024}")
            a(f"buffer_load_dwordx2 v[{80+(b*8+s)*2}:{81+(b*8+s)*2}], v7, s[16:19], s{22+b} offen offset:{s*1024}" if s < 4 else
              f"buffer_load_dwordx2 v[{80+(b*8+s)*2}:{81+(b*8+s)*2}], v7, s[16:19], s{24+b} offen offset:{(s-4)*1024}")
            if s == 0 and b == 0:
                a("s_add_u32 s24, s22, 4096")
                a("s_add_u32 s25, s23, 4096")
    a("v_and_b32 v28, 7, v0")
    a("v_lshrrev_b32 v29, 3, v0")
    a("v_mul_u32_u24 v30, 1280, v29")
    a("v_lshl_add_u32 v30, v28, 4, v30")
    a("s_mul_i32 s26, s20, 245760")
    a("s_lshl_b32 s27, s21, 7")
    a("s_add_u32 s26, s26, s27")
    for i in range(6):
        a(f"buffer_load_dwordx4 v[{32+4*i}:{35+4*i}], v30, s[12:15], s26 offen nt")
        if i < 5:
            a("s_add_u32 s26, s26, 40960")
    a(f"s_mov_b32 s29, {f32hex(LOG2E)}")
    a("s_waitcnt vmcnt(6)")
    for b in range(2):
        M = [80 + (b * 8 + s) * 2 for s in range(8)]
        O = [64 + b * 8 + s for s in range(8)]
        a(f"v_max_f32 v8, v{M[0]}, v{M[1]}")
        for s in range(2, 8, 2):
            a(f"v_max3_f32 v8, v8, v{M[s]}, v{M[s+1]}")
        for s in range(8):
            a(f"v_sub_f32 v{M[s]}, v{M[s]}, v8")
            a(f"v_mul_f32 v{M[s]}, s29, v{M[s]}")
            a(f"v_exp_f32 v{M[s]}, v{M[s]}")
        a("s_nop 0")
        a(f"v_mul_f32 v9, v{M[0]}, v{M[0]+1}")
        a(f"v_mul_f32 v10, v{M[0]}, v{O[0]}")
        for s in range(1, 8):
            a(f"v_fmac_f32 v9, v{M[s]}, v{M[s]+1}")
            a(f"v_fmac_f32 v10, v{M[s]}, v{O[s]}")
        a("v_rcp_f32 v9, v9")
        a("s_nop 0")
        a(f"v_mul_f32 v{12+b}, v10, v9")
        bf16r(a, 12 + b, 12 + b)
    a("v_lshlrev_b32 v11, 3, v0")
    a("v_cmp_gt_u32 vcc, 192, v0")
    a("s_and_saveexec_b64 s[30:31], vcc")
    a("ds_write_b64 v11, v[12:13]")
    a("s_mov_b64 exec, s[30:31]")
    a("s_waitcnt lgkmcnt(0)")
    a("s_barrier")
    a("v_lshlrev_b32 v24, 3, v29")
    for i in range(6):
        a(f"ds_read_b64 v[{112+2*i}:{113+2*i}], v24 offset:{i*256}")
    for r in range(152, 168):
        a(f"v_mov_b32 v{r}, 0")
    a("s_waitcnt lgkmcnt(0)")
    for i in range(6):
        a(f"s_waitcnt vmcnt({5-i})")
        for r in range(4):
            unpack_fma(a, 32 + 4 * i + r,
                       [(152 + 2 * r, 153 + 2 * r), (160 + 2 * r, 161 + 2 * r)],
                       [112 + 2 * i, 113 + 2 * i])
    a("v_lshlrev_b32 v24, 9, v29")
    a("v_lshl_add_u32 v24, v28, 5, v24")
    a(f"ds_write_b128 v24, v[152:155] offset:{2048}")
    a(f"ds_write_b128 v24, v[156:159] offset:{2048+16}")
    a(f"ds_write_b128 v24, v[160:163] offset:{2048+256}")
    a(f"ds_write_b128 v24, v[164:167] offset:{2048+256+16}")
    a("s_waitcnt lgkmcnt(0)")
    a("s_barrier")
    a("v_cmp_gt_u32 vcc, 128, v0")
    a("s_and_saveexec_b64 s[22:23], vcc")
    a("s_cbranch_execz kb_done")
    a("v_lshlrev_b32 v24, 2, v0")
    for rg in range(32):
        a(f"ds_read_b32 v{32+rg}, v24 offset:{2048+rg*512}")
    a("s_waitcnt lgkmcnt(0)")
    a("v_add_f32 v25, v32, v33")
    for rg in range(2, 32):
        a(f"v_add_f32 v25, v25, v{32+rg}")
    a("v_mul_u32_u24 v26, 2560, v2")
    a("v_lshl_add_u32 v26, v1, 2, v26")
    a("s_lshl_b32 s27, s21, 8")
    a(f"s_add_u32 s27, s27, {ACC1_OFF}")
    a("buffer_atomic_add_f32 v25, v26, s[16:19], s27 offen")
    a.label("kb_done")
    a("s_endpgm")
    return name, 168


def k_c(a):
    name = "kc_kernel"
    kernel_header(a, name)
    a("s_cmp_ge_u32 s2, 96")
    a("s_cbranch_scc1 kc_done")
    load_srds(a, [("x", 8), ("wg", 12), ("ws", 16), ("wu", 20), ("wd", 24), ("out", 28), ("dbg", 32)])
    prologue_ids(a)
    a("s_and_b32 s40, s2, 7")
    a("s_mul_i32 s40, s40, 12")
    a("s_lshr_b32 s41, s2, 3")
    a("s_add_u32 s40, s40, s41")
    a("v_and_b32 v6, 1, v2")
    a("v_mul_u32_u24 v7, 1280, v6")
    a("v_add_u32 v7, v7, v3")
    a("v_lshlrev_b32 v27, 1, v7")
    for i in range(5):
        a(f"buffer_load_dword v{8+i}, v7, s[8:11], 0 offen offset:{i*256}")
    a(f"s_mov_b32 s42, {ACC1_OFF}")
    for i in range(5):
        a(f"buffer_load_dwordx2 v[{100+2*i}:{101+2*i}], v27, s[16:19], s42 offen offset:{i*512}")
    a("v_and_b32 v28, 1, v0")
    a("v_lshrrev_b32 v29, 1, v0")
    a("v_mul_u32_u24 v30, 3072, v29")
    a("v_lshl_add_u32 v30, v28, 4, v30")
    a("s_lshl_b32 s43, s40, 5")
    for i in range(5):
        a(f"buffer_load_dwordx4 v[{32+4*i}:{35+4*i}], v30, s[12:15], s43 offen nt")
        a(f"buffer_load_dwordx4 v[{52+4*i}:{55+4*i}], v30, s[20:23], s43 offen nt")
        if i < 4:
            a("s_add_u32 s43, s43, 393216")
    a("v_mul_u32_u24 v31, 205, v0")
    a("v_lshrrev_b32 v31, 14, v31")
    a("v_mul_u32_u24 v98, 80, v31")
    a("v_sub_u32 v98, v0, v98")
    a("v_mul_u32_u24 v99, 1280, v31")
    a("v_lshl_add_u32 v99, v98, 4, v99")
    a("s_mul_i32 s43, s40, 20480")
    for i in range(6):
        a(f"buffer_load_dwordx4 v[{72+4*i}:{75+4*i}], v99, s[24:27], s43 offen nt")
        if i < 5:
            a("s_add_u32 s43, s43, 3840")
    a("s_waitcnt vmcnt(16)")
    vals = list(range(14, 24))
    H = list(range(110, 120))
    for i in range(5):
        a(f"v_lshlrev_b32 v{14+2*i}, 16, v{8+i}")
        a(f"v_and_b32 v{15+2*i}, 0xffff0000, v{8+i}")
    for e in range(10):
        bf16r(a, 100 + e, 100 + e)
        a(f"v_add_f32 v{14+e}, v{14+e}, v{100+e}")
        bf16r(a, 14 + e, 14 + e)
        a(f"v_mov_b32 v{H[e]}, v{14+e}")
    emit_ln(a, vals, 3, 24, 25, 26, 5)
    a("v_lshlrev_b32 v24, 4, v1")
    a("v_lshl_add_u32 v24, v6, 2, v24")
    for i in range(5):
        a(f"ds_write_b32 v24, v{14+2*i} offset:{i*1024}")
        a(f"ds_write_b32 v24, v{15+2*i} offset:{i*1024+8}")
    a("s_waitcnt lgkmcnt(0)")
    a("s_barrier")
    a("v_lshlrev_b32 v24, 3, v29")
    for i in range(5):
        a(f"ds_read_b64 v[{120+2*i}:{121+2*i}], v24 offset:{i*1024}")
    A = 132
    for r in range(A, A + 32):
        a(f"v_mov_b32 v{r}, 0")
    a("s_waitcnt lgkmcnt(0)")
    for i in range(5):
        for m in range(2):
            a(f"s_waitcnt vmcnt({6 + (4-i)*2 + (1-m)})")
            for r in range(4):
                base = A + m * 16
                unpack_fma(a, (32 if m == 0 else 52) + 4 * i + r,
                           [(base + 2 * r, base + 2 * r + 1), (base + 8 + 2 * r, base + 9 + 2 * r)],
                           [120 + 2 * i, 121 + 2 * i])
    RED = 5120
    a("v_lshlrev_b32 v24, 8, v29")
    a("v_lshl_add_u32 v24, v28, 5, v24")
    for mb in range(4):
        a(f"ds_write_b128 v24, v[{A+8*mb}:{A+8*mb+3}] offset:{RED+mb*64}")
        a(f"ds_write_b128 v24, v[{A+8*mb+4}:{A+8*mb+7}] offset:{RED+mb*64+16}")
    a("s_waitcnt lgkmcnt(0)")
    a("s_barrier")
    a("v_lshlrev_b32 v24, 13, v2")
    a("v_add_u32 v24, v24, v3")
    for r in range(32):
        a(f"ds_read_b32 v{A+r}, v24 offset:{RED+r*256}")
    a("s_waitcnt lgkmcnt(0)")
    a(f"v_add_f32 v25, v{A}, v{A+1}")
    for r in range(2, 32):
        a(f"v_add_f32 v25, v25, v{A+r}")
    RED2 = RED + 32768
    a("v_lshlrev_b32 v24, 2, v0")
    a(f"ds_write_b32 v24, v25 offset:{RED2}")
    a("s_waitcnt lgkmcnt(0)")
    a("s_barrier")
    GL = RED2 + 1024
    a("v_cmp_gt_u32 vcc, 36, v0")
    a("s_and_saveexec_b64 s[44:45], vcc")
    a("s_cbranch_execz kc_skipg")
    a("v_lshlrev_b32 v24, 2, v0")
    for w in range(4):
        a(f"ds_read_b32 v{A+w}, v24 offset:{RED2+w*256}")
        a(f"ds_read_b32 v{A+4+w}, v24 offset:{RED2+w*256+128}")
    a("s_waitcnt lgkmcnt(0)")
    a(f"v_add_f32 v25, v{A}, v{A+1}")
    a(f"v_add_f32 v25, v25, v{A+2}")
    a(f"v_add_f32 v25, v25, v{A+3}")
    a(f"v_add_f32 v26, v{A+4}, v{A+5}")
    a(f"v_add_f32 v26, v26, v{A+6}")
    a(f"v_add_f32 v26, v26, v{A+7}")
    bf16r(a, 25, 25)
    bf16r(a, 26, 26)
    a("v_mul_f32 v4, v25, v25")
    a("v_mul_f32 v4, v4, v25")
    a(f"v_mov_b32 v5, {f32hex(0.044715)}")
    a("v_fma_f32 v4, v4, v5, v25")
    a(f"v_mul_f32 v4, {f32hex(2.0*math.sqrt(2.0/math.pi)*LOG2E)}, v4")
    a("v_exp_f32 v4, v4")
    a("s_nop 0")
    a("v_add_f32 v4, 1.0, v4")
    a("v_rcp_f32 v4, v4")
    a("s_nop 0")
    a("v_fma_f32 v4, v4, -2.0, 2.0")
    a("v_mul_f32 v4, 0.5, v4")
    a("v_mul_f32 v4, v4, v25")
    bf16r(a, 4, 4)
    a("v_mul_f32 v4, v4, v26")
    bf16r(a, 4, 4)
    a("v_cmp_gt_u32 vcc, 32, v0")
    a("s_nop 1")
    a("v_cndmask_b32 v4, 0, v4, vcc")
    a("v_and_b32 v5, 15, v0")
    a("v_lshlrev_b32 v5, 3, v5")
    a("v_lshrrev_b32 v24, 4, v0")
    a("v_lshl_add_u32 v5, v24, 2, v5")
    a("v_lshlrev_b32 v24, 2, v0")
    a("v_cndmask_b32 v5, v24, v5, vcc")
    a(f"ds_write_b32 v5, v4 offset:{GL}")
    if DEBUG:
        a("v_lshlrev_b32 v24, 4, v0")
        a("s_lshl_b32 s47, s40, 10")
        a("s_add_u32 s47, s47, 0x80000")
        a("v_mov_b32 v6, v4")
        a("v_mov_b32 v4, v25")
        a("v_mov_b32 v5, v26")
        a("buffer_store_dwordx4 v[4:7], v24, s[16:19], s47 offen")
    a.label("kc_skipg")
    a("s_mov_b64 exec, s[44:45]")
    a("s_waitcnt lgkmcnt(0)")
    a("s_barrier")
    a("v_lshlrev_b32 v24, 3, v31")
    for i in range(6):
        a(f"ds_read_b64 v[{120+2*i}:{121+2*i}], v24 offset:{GL+i*24}")
    for r in range(A, A + 16):
        a(f"v_mov_b32 v{r}, 0")
    a("s_waitcnt lgkmcnt(0)")
    for i in range(6):
        a(f"s_waitcnt vmcnt({5-i})")
        for r in range(4):
            unpack_fma(a, 72 + 4 * i + r,
                       [(A + 2 * r, A + 2 * r + 1), (A + 8 + 2 * r, A + 9 + 2 * r)],
                       [120 + 2 * i, 121 + 2 * i])
    a("v_mul_u32_u24 v24, 5120, v31")
    a("v_lshl_add_u32 v24, v98, 5, v24")
    a("v_cmp_gt_u32 vcc, 240, v0")
    a("s_and_saveexec_b64 s[44:45], vcc")
    a(f"ds_write_b128 v24, v[{A}:{A+3}] offset:{RED}")
    a(f"ds_write_b128 v24, v[{A+4}:{A+7}] offset:{RED+16}")
    a(f"ds_write_b128 v24, v[{A+8}:{A+11}] offset:{RED+2560}")
    a(f"ds_write_b128 v24, v[{A+12}:{A+15}] offset:{RED+2560+16}")
    a("s_mov_b64 exec, s[44:45]")
    a("s_waitcnt lgkmcnt(0)")
    a("s_barrier")
    a("v_lshlrev_b32 v24, 2, v0")
    for k in range(5):
        for r in range(3):
            a(f"ds_read_b32 v{A+k*3+r}, v24 offset:{RED+r*5120+k*1024}")
    a("s_waitcnt lgkmcnt(0)")
    a(f"s_mov_b32 s42, {ACC2_OFF}")
    for k in range(5):
        a(f"v_add_f32 v{A+k*3}, v{A+k*3}, v{A+k*3+1}")
        a(f"v_add_f32 v{A+k*3}, v{A+k*3}, v{A+k*3+2}")
        if k == 4:
            a(f"s_mov_b32 s42, {ACC2_OFF+4096}")
        a(f"buffer_atomic_add_f32 v{A+k*3}, v24, s[16:19], s42 offen offset:{(k%4)*1024}")
    a("s_waitcnt vmcnt(0)")
    a("s_barrier")
    a("v_cmp_eq_u32 vcc, 0, v0")
    a("s_and_saveexec_b64 s[44:45], vcc")
    a("s_cbranch_execz kc_nocnt")
    a("v_mov_b32 v4, 1")
    a("v_mov_b32 v5, 0")
    a("buffer_atomic_add v4, v5, s[32:35], 0 offen sc0")
    a("s_waitcnt vmcnt(0)")
    a(f"ds_write_b32 v5, v4 offset:{GL}")
    a.label("kc_nocnt")
    a("s_mov_b64 exec, s[44:45]")
    a("s_waitcnt lgkmcnt(0)")
    a("s_barrier")
    a("v_mov_b32 v5, 0")
    a(f"ds_read_b32 v4, v5 offset:{GL}")
    a("s_waitcnt lgkmcnt(0)")
    a("v_readfirstlane_b32 s46, v4")
    a("s_cmp_lg_u32 s46, 95")
    a("s_cbranch_scc1 kc_done")
    a("v_cmp_gt_u32 vcc, 128, v0")
    a("s_and_saveexec_b64 s[44:45], vcc")
    a("s_cbranch_execz kc_done")
    a(f"s_mov_b32 s42, {ACC2_OFF}")
    for i in range(5):
        a(f"buffer_load_dwordx2 v[{100+2*i}:{101+2*i}], v27, s[16:19], s42 offen offset:{i*512} sc0 sc1")
    a("s_waitcnt vmcnt(0)")
    for e in range(10):
        bf16r(a, 100 + e, 100 + e)
        a(f"v_add_f32 v{100+e}, v{100+e}, v{H[e]}")
    for i in range(5):
        a(f"v_cvt_pk_bf16_f32 v{8+i}, v{100+2*i}, v{101+2*i}")
        a(f"buffer_store_dword v{8+i}, v7, s[28:31], 0 offen offset:{i*256}")
    a.label("kc_done")
    a("s_endpgm")
    return name, 168


def main(out):
    a = Asm()
    hdr = open("cdna_kernels/" + NAME + ".s.ref").read().split("; Override launch geometry")[0]
    launches = [
        ("ka_kernel", 256, 160512),
        ("kb_kernel", 320, 2048 + 16384),
        ("kc_kernel", 96, 5120 + 32768 + 1024 + 256),
    ]
    txt = hdr
    for k, g, l in launches:
        blk = 512 if k == "ka_kernel" else 256
        txt += f"; @launch kernel={k} grid=({g},1,1) block=({blk},1,1) lds={l}\n"
    txt += '.amdgcn_target "amdgcn-amd-amdhsa--gfx950"\n.text\n'
    descs = []
    for fn in (k_a, k_b, k_c):
        n, v = fn(a)
        descs.append(kernel_desc(n, v))
    txt += a.text()
    txt += '.section .rodata,"a"\n.p2align 6\n'
    for d in descs:
        txt += ".p2align 6\n" + d
    open(out, "w").write(txt)


if __name__ == "__main__":
    main(sys.argv[1] if len(sys.argv) > 1 else "cdna_kernels/" + NAME + ".s")
```

```python
import math
import sys
from common import *

NAME = "sequential_preLN__sliding_block_cached__geglu_ffn__decode"
Q_OFF = 0
ACC1_OFF = 32768
ACC2_OFF = 40960
PART_OFF = 65536
NSPLIT = 8
DEBUG = False
LOG2E = math.log2(math.e)
SCALE = 192 ** -0.5


def f32hex(x):
    import struct
    return "0x%08x" % struct.unpack("<I", struct.pack("<f", x))[0]


def unpack_fma(a, wreg, accs, xs):
    a(f"v_lshlrev_b32 v4, 16, v{wreg}")
    a(f"v_and_b32 v5, 0xffff0000, v{wreg}")
    for (lo, hi), x in zip(accs, xs):
        a(f"v_fmac_f32 v{lo}, v{x}, v4")
        a(f"v_fmac_f32 v{hi}, v{x}, v5")


def prologue_ids(a):
    a("v_and_b32 v1, 63, v0")
    a("v_lshrrev_b32 v2, 6, v0")
    a("v_lshlrev_b32 v3, 2, v1")


QP_OFF = 4 << 20


def k_q(a):
    name = "kq_kernel"
    kernel_header(a, name)
    a("s_cmp_ge_u32 s2, 256")
    a("s_cbranch_scc1 kq_done")
    load_srds(a, [("x", 8), ("wq", 12), ("ws", 16)])
    prologue_ids(a)
    a("s_lshr_b32 s20, s2, 3")
    a("s_and_b32 s21, s2, 7")
    a("v_and_b32 v6, 1, v2")
    a("v_mul_u32_u24 v7, 1280, v6")
    a("v_add_u32 v7, v7, v3")
    for i in range(5):
        a(f"buffer_load_dword v{8+i}, v7, s[8:11], 0 offen offset:{i*256}")
    a("v_lshrrev_b32 v28, 5, v1")
    a("v_and_b32 v29, 31, v1")
    a("v_lshl_add_u32 v30, v2, 1, v28")
    a("v_mul_u32_u24 v31, 12288, v30")
    a("v_mul_u32_u24 v27, 12, v29")
    a("v_add_u32 v31, v31, v27")
    a("s_mul_i32 s22, s20, 384")
    a("s_mul_i32 s23, s21, 983040")
    a("s_add_u32 s22, s22, s23")
    WQ = 32
    for i in range(10):
        a(f"buffer_load_dwordx3 v[{WQ+4*i}:{WQ+4*i+2}], v31, s[12:15], s22 offen nt")
        if i < 9:
            a("s_add_u32 s22, s22, 98304")
    a("s_waitcnt vmcnt(10)")
    vals = list(range(14, 24))
    for i in range(5):
        a(f"v_lshlrev_b32 v{14+2*i}, 16, v{8+i}")
        a(f"v_and_b32 v{15+2*i}, 0xffff0000, v{8+i}")
    emit_ln(a, vals, 3, 24, 25, 26, 27)
    a("v_lshlrev_b32 v24, 4, v1")
    a("v_lshl_add_u32 v24, v6, 2, v24")
    for i in range(5):
        a(f"ds_write_b32 v24, v{14+2*i} offset:{i*1024}")
        a(f"ds_write_b32 v24, v{15+2*i} offset:{i*1024+8}")
    a("s_waitcnt lgkmcnt(0)")
    a("s_barrier")
    a("s_mul_i32 s23, s21, 640")
    a("v_lshlrev_b32 v24, 3, v30")
    a("v_add_u32 v24, s23, v24")
    XN = 72
    for i in range(10):
        a(f"ds_read_b64 v[{XN+2*i}:{XN+2*i+1}], v24 offset:{i*64}")
    A = 92
    for r in range(A, A + 12):
        a(f"v_mov_b32 v{r}, 0")
    a("s_waitcnt lgkmcnt(0)")
    for i in range(10):
        a(f"s_waitcnt vmcnt({9-i})")
        for r in range(3):
            unpack_fma(a, WQ + 4 * i + r, [(A + 2 * r, A + 1 + 2 * r), (A + 6 + 2 * r, A + 7 + 2 * r)],
                       [XN + 2 * i, XN + 2 * i + 1])
    a("v_mul_u32_u24 v24, 1536, v30")
    a("v_mul_u32_u24 v25, 24, v29")
    a("v_add_u32 v24, v24, v25")
    for b in range(2):
        for k in range(3):
            a(f"ds_write_b64 v24, v[{A+6*b+2*k}:{A+6*b+2*k+1}] offset:{5120+b*768+k*8}")
    a("s_waitcnt lgkmcnt(0)")
    a("s_barrier")
    a("v_lshlrev_b32 v24, 2, v0")
    a("s_mul_i32 s22, s2, 1536")
    a(f"s_add_u32 s22, s22, {QP_OFF}")
    for part in range(2):
        if part == 1:
            a("v_cmp_gt_u32 vcc, 128, v0")
            a("s_and_saveexec_b64 s[24:25], vcc")
            a("s_cbranch_execz kq_done")
        for w in range(8):
            a(f"ds_read_b32 v{32+w}, v24 offset:{5120+w*1536+part*1024}")
        a("s_waitcnt lgkmcnt(0)")
        a("v_add_f32 v32, v32, v33")
        for w in range(2, 8):
            a(f"v_add_f32 v32, v32, v{32+w}")
        a(f"buffer_store_dword v32, v24, s[16:19], s22 offen offset:{part*1024}")
    a.label("kq_done")
    a("s_endpgm")
    return name, 104


def k_a(a):
    name = "ka_kernel"
    kernel_header(a, name)
    a("s_cmp_ge_u32 s2, 256")
    a("s_cbranch_scc1 ka_done")
    load_srds(a, [("k", 8), ("v", 12), ("ws", 16)])
    prologue_ids(a)
    a("v_and_b32 v6, 15, v1")
    a("v_lshrrev_b32 v7, 4, v1")
    a("v_readfirstlane_b32 s33, v2")
    a("s_and_b32 s20, s2, 7")
    a("s_lshl_b32 s20, s20, 2")
    a("s_lshr_b32 s21, s2, 3")
    a("s_and_b32 s22, s21, 3")
    a("s_add_u32 s20, s20, s22")
    a("s_lshr_b32 s21, s2, 5")
    AUX = 147456
    QL = 0
    a("v_lshlrev_b32 v40, 2, v0")
    a("s_mul_i32 s30, s20, 12288")
    a(f"s_add_u32 s30, s30, {QP_OFF}")
    for sp in range(8):
        a(f"buffer_load_dword v{48+sp}, v40, s[16:19], s30 offen")
        if sp < 7:
            a("s_add_u32 s30, s30, 1536")
    for i in range(6):
        a(f"v_add_u32 v11, {4*i}, v7")
        a("v_mul_u32_u24 v11, 0x56, v11")
        a("v_lshrrev_b32 v11, 8, v11")
        a("v_and_b32 v11, 3, v11")
        a("v_lshlrev_b32 v11, 1, v11")
        a("v_xor_b32 v11, v11, v1")
        a(f"v_lshlrev_b32 v{16+i}, 4, v11")
    a("s_lshr_b32 s22, s33, 2")
    a("s_and_b32 s23, s33, 3")
    a("s_lshl_b32 s27, s22, 5")
    a("s_add_u32 s27, s27, s20")
    a("s_mul_i32 s24, s27, 3145728")
    a("s_mul_i32 s25, s21, 98304")
    a("s_add_u32 s24, s24, s25")
    a("s_mul_i32 s25, s23, 24576")
    a("s_add_u32 s24, s24, s25")
    a("s_add_u32 s24, s24, 2359296")
    a("s_mul_i32 s34, s33, 18432")

    def dma(tile):
        srd = 8 if tile < 4 else 12
        t = tile % 4
        slot = tile % 3
        a(f"s_add_u32 s26, s34, {slot*6144}")
        a("s_mov_b32 m0, s26")
        a(f"s_add_u32 s25, s24, {t*6144}")
        for i in range(4):
            a(f"buffer_load_dwordx4 v{16+i}, s[{srd}:{srd+3}], s25 offen offset:{i*1024} nt lds")
        a(f"s_add_u32 s26, s34, {slot*6144+4096}")
        a("s_mov_b32 m0, s26")
        a(f"s_add_u32 s25, s24, {t*6144+4096}")
        for i in range(4, 6):
            a(f"buffer_load_dwordx4 v{16+i}, s[{srd}:{srd+3}], s25 offen offset:{(i-4)*1024} nt lds")

    for t in range(3):
        dma(t)
    a("v_mul_u32_u24 v15, 18432, v2")
    a("v_lshrrev_b32 v22, 1, v6")
    a("v_and_b32 v22, 3, v22")
    a("v_lshlrev_b32 v22, 1, v22")
    a("v_mul_u32_u24 v23, 24, v6")
    a("v_add_u32 v23, v23, v7")
    for m in range(6):
        a(f"v_add_u32 v30, {4*m}, v23")
        a("v_xor_b32 v30, v30, v22")
        a(f"v_lshl_add_u32 v{24+m}, v30, 4, v15")
    Q = 64
    a("v_lshrrev_b32 v30, 2, v2")
    a("v_mul_u32_u24 v30, 384, v30")
    a("v_lshl_add_u32 v30, v7, 4, v30")
    a(f"v_add_u32 v30, {AUX+QL}, v30")
    a(f"s_mov_b32 s28, {f32hex(SCALE)}")
    a(f"s_mov_b32 s29, {f32hex(LOG2E)}")
    a("s_waitcnt vmcnt(18)")
    for sp in range(1, 8):
        a(f"v_add_f32 v48, v48, v{48+sp}")
    a("v_cvt_pk_bf16_f32 v48, v48, v48")
    a("v_lshlrev_b32 v40, 1, v0")
    a(f"v_add_u32 v40, {AUX+QL}, v40")
    a("v_cmp_gt_u32 vcc, 384, v0")
    a("s_and_saveexec_b64 s[50:51], vcc")
    a("ds_write_b16 v40, v48")
    a("s_mov_b64 exec, s[50:51]")
    a("s_waitcnt lgkmcnt(0)")
    a("s_barrier")
    for j in range(6):
        a(f"ds_read_b128 v[{Q+4*j}:{Q+4*j+3}], v30 offset:{j*64}")
    TB = 96
    D = 32
    ACC = 120
    for tile in range(8):
        a(f"s_waitcnt vmcnt({12 if tile <= 5 else (6 if tile == 6 else 0)})")
        slot = tile % 3
        for m in range(6):
            a(f"ds_read_b128 v[{TB+4*m}:{TB+4*m+3}], v{24+m} offset:{slot*6144}")
        a("s_waitcnt lgkmcnt(0)")
        if tile + 3 < 8:
            dma(tile + 3)
        if tile < 4:
            t = tile
            for j in range(6):
                c = "0" if j == 0 else f"v[{D+4*t}:{D+4*t+3}]"
                a(f"v_mfma_f32_16x16x32_bf16 v[{D+4*t}:{D+4*t+3}], v[{Q+4*j}:{Q+4*j+3}], v[{TB+4*j}:{TB+4*j+3}], {c}")
            if t == 3:
                a("s_nop 7")
                a("s_nop 1")
                for tt in range(4):
                    s_ = D + 4 * tt
                    bf16r(a, s_, s_)
                    a(f"v_mul_f32 v{s_}, s28, v{s_}")
                    bf16r(a, s_, s_)
                a(f"v_max_f32 v11, v{D}, v{D+4}")
                a(f"v_max3_f32 v11, v11, v{D+8}, v{D+12}")
                for r in (1, 2, 4, 8):
                    a("s_nop 1")
                    a(f"v_max_f32_dpp v11, v11, v11 row_ror:{r} row_mask:0xf bank_mask:0xf")
                for tt in range(4):
                    s_ = D + 4 * tt
                    a(f"v_sub_f32 v{s_}, v{s_}, v11")
                    a(f"v_mul_f32 v{s_}, s29, v{s_}")
                    a(f"v_exp_f32 v{s_}, v{s_}")
                a("s_nop 0")
                a(f"v_add_f32 v12, v{D}, v{D+4}")
                a(f"v_add_f32 v12, v12, v{D+8}")
                a(f"v_add_f32 v12, v12, v{D+12}")
            else:
                a("s_nop 3")
        else:
            t = tile - 4
            p = D + 4 * t
            for r in range(24):
                w = TB + r
                a(f"v_lshlrev_b32 v4, 16, v{w}")
                a(f"v_and_b32 v5, 0xffff0000, v{w}")
                if t == 0:
                    a(f"v_mul_f32 v{ACC+2*r}, v{p}, v4")
                    a(f"v_mul_f32 v{ACC+2*r+1}, v{p}, v5")
                else:
                    a(f"v_fmac_f32 v{ACC+2*r}, v{p}, v4")
                    a(f"v_fmac_f32 v{ACC+2*r+1}, v{p}, v5")
    regs = list(range(ACC, ACC + 48)) + [12]
    for r in (1, 2, 4, 8):
        a("s_nop 1")
        for x in regs:
            a(f"v_add_f32_dpp v{x}, v{x}, v{x} row_ror:{r} row_mask:0xf bank_mask:0xf")
    a("v_mul_u32_u24 v13, 18432, v2")
    a("v_lshl_add_u32 v14, v7, 5, v13")
    a("v_cmp_eq_u32 vcc, 0, v6")
    a("s_and_saveexec_b64 s[30:31], vcc")
    for j in range(6):
        a(f"ds_write_b128 v14, v[{ACC+8*j}:{ACC+8*j+3}] offset:{j*128}")
        a(f"ds_write_b128 v14, v[{ACC+8*j+4}:{ACC+8*j+7}] offset:{j*128+16}")
    a("v_mov_b32 v18, v11")
    a("v_mov_b32 v19, v12")
    a("ds_write_b64 v13, v[18:19] offset:768")
    a("s_mov_b64 exec, s[30:31]")
    a("s_waitcnt lgkmcnt(0)")
    a("s_barrier")
    a("v_and_b32 v16, 255, v0")
    a("v_lshrrev_b32 v15, 8, v0")
    a("v_mul_u32_u24 v18, 73728, v15")
    a("v_lshl_add_u32 v17, v16, 2, v18")
    for w in range(4):
        a(f"ds_read_b64 v[{20+2*w}:{21+2*w}], v18 offset:{w*18432+768}")
        a(f"ds_read_b32 v{30+w}, v17 offset:{w*18432}")
    a("s_waitcnt lgkmcnt(0)")
    a("v_max_f32 v34, v20, v22")
    a("v_max3_f32 v34, v34, v24, v26")
    for w in range(4):
        a(f"v_sub_f32 v{20+2*w}, v{20+2*w}, v34")
        a(f"v_mul_f32 v{20+2*w}, s29, v{20+2*w}")
        a(f"v_exp_f32 v{20+2*w}, v{20+2*w}")
    a("s_nop 0")
    a("v_mul_f32 v35, v20, v21")
    a("v_mul_f32 v36, v20, v30")
    for w in range(1, 4):
        a(f"v_fmac_f32 v35, v{20+2*w}, v{21+2*w}")
        a(f"v_fmac_f32 v36, v{20+2*w}, v{30+w}")
    a("v_cmp_eq_u32 vcc, 192, v16")
    a("s_nop 1")
    a("v_cndmask_b32 v36, v36, v34, vcc")
    a("v_cmp_eq_u32 vcc, 193, v16")
    a("s_nop 1")
    a("v_cndmask_b32 v36, v36, v35, vcc")
    a("v_cmp_gt_u32 vcc, 194, v16")
    a("s_and_saveexec_b64 s[30:31], vcc")
    a("s_cbranch_execz ka_done")
    a("s_lshl_b32 s22, s20, 3")
    a("s_add_u32 s22, s22, s21")
    a("s_lshl_b32 s22, s22, 10")
    a(f"s_add_u32 s22, s22, {PART_OFF}")
    a("v_lshlrev_b32 v17, 18, v15")
    a("v_lshl_add_u32 v17, v16, 2, v17")
    a("buffer_store_dword v36, v17, s[16:19], s22 offen")
    a.label("ka_done")
    a("s_endpgm")
    return name, 168


P1_OFF = 1 << 20
P2_OFF = 2 << 20
H_OFF = 3 << 20


def k_b(a):
    name = "kb_kernel"
    kernel_header(a, name)
    a("s_cmp_ge_u32 s2, 160")
    a("s_cbranch_scc1 kb_done")
    load_srds(a, [("wo", 12), ("ws", 16)])
    prologue_ids(a)
    a("s_and_b32 s20, s2, 7")
    a("s_lshr_b32 s21, s2, 3")
    a("v_lshrrev_b32 v6, 5, v1")
    a("v_and_b32 v7, 31, v1")
    a("v_lshlrev_b32 v6, 18, v6")
    a("v_lshl_add_u32 v6, v7, 10, v6")
    a("s_lshl_b32 s22, s20, 15")
    a(f"s_add_u32 s22, s22, {PART_OFF}")
    a("buffer_load_dwordx2 v[8:9], v6, s[16:19], s22 offen offset:768")
    O = 64
    for k in range(3):
        a(f"v_add_u32 v10, {256*k}, v0")
        a("v_mul_u32_u24 v11, 21846, v10")
        a("v_lshrrev_b32 v11, 22, v11")
        a("v_mul_u32_u24 v12, 192, v11")
        a("v_sub_u32 v12, v10, v12")
        a(f"v_lshlrev_b32 v{13+k}, 13, v11")
        a(f"v_lshl_add_u32 v{13+k}, v12, 2, v{13+k}")
        a(f"v_lshlrev_b32 v{16+k}, 5, v11")
    a("s_add_u32 s23, s22, 4096")
    a("s_add_u32 s24, s22, 262144")
    a("s_add_u32 s25, s24, 4096")
    for k in range(3):
        for b in range(2):
            for sp in range(8):
                sreg = 22 + b * 2 + (sp >= 4)
                a(f"buffer_load_dword v{O+(k*2+b)*8+sp}, v{13+k}, s[16:19], s{sreg} offen offset:{(sp%4)*1024}")
    a("v_and_b32 v28, 3, v0")
    a("v_lshrrev_b32 v29, 2, v0")
    a("v_mul_u32_u24 v30, 1280, v29")
    a("v_lshl_add_u32 v30, v28, 4, v30")
    a("s_mul_i32 s26, s20, 983040")
    a("s_lshl_b32 s27, s21, 6")
    a("s_add_u32 s26, s26, s27")
    W = 112
    for i in range(12):
        a(f"buffer_load_dwordx4 v[{W+4*i}:{W+4*i+3}], v30, s[12:15], s26 offen nt")
        if i < 11:
            a("s_add_u32 s26, s26, 81920")
    a(f"s_mov_b32 s29, {f32hex(LOG2E)}")
    a("s_waitcnt vmcnt(60)")
    a("v_mov_b32 v10, v8")
    for r in (1, 2, 4):
        a("s_nop 1")
        a(f"v_max_f32_dpp v10, v10, v10 row_shr:{r} row_mask:0xf bank_mask:0xf" if False else
          f"ds_swizzle_b32 v11, v10 offset:{(r<<10)|0x1f}")
        a("s_waitcnt lgkmcnt(0)")
        a("v_max_f32 v10, v10, v11")
    a("v_sub_f32 v8, v8, v10")
    a("v_mul_f32 v8, s29, v8")
    a("v_exp_f32 v8, v8")
    a("s_nop 0")
    a("v_mul_f32 v9, v8, v9")
    for r in (1, 2, 4):
        a(f"ds_swizzle_b32 v11, v9 offset:{(r<<10)|0x1f}")
        a("s_waitcnt lgkmcnt(0)")
        a("v_add_f32 v9, v9, v11")
    a("v_rcp_f32 v9, v9")
    a("s_nop 0")
    a("v_mul_f32 v8, v8, v9")
    a("ds_write_b32 v3, v8")
    a("s_waitcnt lgkmcnt(0)")
    a("s_barrier")
    a("s_waitcnt vmcnt(12)")
    OL = 256
    for k in range(3):
        for b in range(2):
            a(f"ds_read_b128 v[20:23], v{16+k} offset:{b*128}")
            a(f"ds_read_b128 v[24:27], v{16+k} offset:{b*128+16}")
            a("s_waitcnt lgkmcnt(0)")
            base = O + (k * 2 + b) * 8
            a(f"v_mul_f32 v{8+b}, v20, v{base}")
            for sp in range(1, 8):
                a(f"v_fmac_f32 v{8+b}, v{20+sp}, v{base+sp}")
            bf16r(a, 8 + b, 8 + b)
        a("v_lshlrev_b32 v10, 3, v0")
        a(f"ds_write_b64 v10, v[8:9] offset:{OL+k*2048}")
    a("s_waitcnt lgkmcnt(0)")
    a("s_barrier")
    a("v_lshlrev_b32 v24, 3, v29")
    X = 64
    for i in range(12):
        a(f"ds_read_b64 v[{X+2*i}:{X+2*i+1}], v24 offset:{OL+i*512}")
    A = 96
    for r in range(A, A + 16):
        a(f"v_mov_b32 v{r}, 0")
    a("s_waitcnt lgkmcnt(0)")
    for i in range(12):
        a(f"s_waitcnt vmcnt({11-i})")
        for r in range(4):
            unpack_fma(a, W + 4 * i + r, [(A + 2 * r, A + 1 + 2 * r), (A + 8 + 2 * r, A + 9 + 2 * r)],
                       [X + 2 * i, X + 2 * i + 1])
    RED = 256 + 6144
    a("v_lshlrev_b32 v24, 8, v29")
    a("v_lshl_add_u32 v24, v28, 5, v24")
    a(f"ds_write_b128 v24, v[{A}:{A+3}] offset:{RED}")
    a(f"ds_write_b128 v24, v[{A+4}:{A+7}] offset:{RED+16}")
    a(f"ds_write_b128 v24, v[{A+8}:{A+11}] offset:{RED+128}")
    a(f"ds_write_b128 v24, v[{A+12}:{A+15}] offset:{RED+128+16}")
    a("s_waitcnt lgkmcnt(0)")
    a("s_barrier")
    a("v_lshlrev_b32 v24, 12, v2")
    a("v_add_u32 v24, v24, v3")
    for r in range(16):
        a(f"ds_read_b32 v{X+r}, v24 offset:{RED+r*256}")
    a("s_waitcnt lgkmcnt(0)")
    a(f"v_add_f32 v25, v{X}, v{X+1}")
    for r in range(2, 16):
        a(f"v_add_f32 v25, v25, v{X+r}")
    RED2 = RED + 16384
    a("v_lshlrev_b32 v24, 2, v0")
    a(f"ds_write_b32 v24, v25 offset:{RED2}")
    a("s_waitcnt lgkmcnt(0)")
    a("s_barrier")
    a("v_cmp_gt_u32 vcc, 64, v0")
    a("s_and_saveexec_b64 s[22:23], vcc")
    a("s_cbranch_execz kb_done")
    for w in range(4):
        a(f"ds_read_b32 v{X+w}, v3 offset:{RED2+w*256}")
    a("s_waitcnt lgkmcnt(0)")
    a(f"v_add_f32 v25, v{X}, v{X+1}")
    a(f"v_add_f32 v25, v25, v{X+2}")
    a(f"v_add_f32 v25, v25, v{X+3}")
    a("v_lshrrev_b32 v26, 5, v1")
    a("v_mul_u32_u24 v26, 2560, v26")
    a("v_and_b32 v27, 31, v1")
    a("v_lshl_add_u32 v26, v27, 2, v26")
    a("s_mul_i32 s27, s20, 5120")
    a("s_lshl_b32 s28, s21, 7")
    a("s_add_u32 s27, s27, s28")
    a(f"s_add_u32 s27, s27, {P1_OFF}")
    a("buffer_store_dword v25, v26, s[16:19], s27 offen")
    a.label("kb_done")
    a("s_endpgm")
    return name, 160


def k_c(a):
    name = "kc_kernel"
    kernel_header(a, name)
    a("s_cmp_ge_u32 s2, 96")
    a("s_cbranch_scc1 kc_done")
    load_srds(a, [("x", 8), ("wg", 12), ("ws", 16), ("wu", 20), ("wd", 24)])
    prologue_ids(a)
    a("s_and_b32 s40, s2, 7")
    a("s_mul_i32 s40, s40, 12")
    a("s_lshr_b32 s41, s2, 3")
    a("s_add_u32 s40, s40, s41")
    a("v_and_b32 v6, 1, v2")
    a("v_mul_u32_u24 v7, 1280, v6")
    a("v_add_u32 v7, v7, v3")
    a("v_lshlrev_b32 v27, 1, v7")
    for i in range(5):
        a(f"buffer_load_dword v{8+i}, v7, s[8:11], 0 offen offset:{i*256}")
    PP = 164
    a(f"s_mov_b32 s42, {P1_OFF}")
    for g in range(8):
        for i in range(5):
            a(f"buffer_load_dwordx2 v[{PP+g*10+2*i}:{PP+g*10+2*i+1}], v27, s[16:19], s42 offen offset:{i*512}")
        if g < 7:
            a("s_add_u32 s42, s42, 5120")
    a("v_and_b32 v28, 1, v0")
    a("v_lshrrev_b32 v29, 1, v0")
    a("v_mul_u32_u24 v30, 3072, v29")
    a("v_lshl_add_u32 v30, v28, 4, v30")
    a("s_lshl_b32 s43, s40, 5")
    for i in range(5):
        a(f"buffer_load_dwordx4 v[{32+4*i}:{35+4*i}], v30, s[12:15], s43 offen nt")
        a(f"buffer_load_dwordx4 v[{52+4*i}:{55+4*i}], v30, s[20:23], s43 offen nt")
        if i < 4:
            a("s_add_u32 s43, s43, 393216")
    a("v_mul_u32_u24 v31, 205, v0")
    a("v_lshrrev_b32 v31, 14, v31")
    a("v_mul_u32_u24 v98, 80, v31")
    a("v_sub_u32 v98, v0, v98")
    a("v_mul_u32_u24 v99, 1280, v31")
    a("v_lshl_add_u32 v99, v98, 4, v99")
    a("s_mul_i32 s43, s40, 20480")
    for i in range(6):
        a(f"buffer_load_dwordx4 v[{72+4*i}:{75+4*i}], v99, s[24:27], s43 offen nt")
        if i < 5:
            a("s_add_u32 s43, s43, 3840")
    a("s_waitcnt vmcnt(16)")
    vals = list(range(14, 24))
    for i in range(5):
        a(f"v_lshlrev_b32 v{14+2*i}, 16, v{8+i}")
        a(f"v_and_b32 v{15+2*i}, 0xffff0000, v{8+i}")
    for e in range(10):
        for g in range(1, 8):
            a(f"v_add_f32 v{PP+e}, v{PP+e}, v{PP+g*10+e}")
        bf16r(a, PP + e, PP + e)
        a(f"v_add_f32 v{14+e}, v{14+e}, v{PP+e}")
        bf16r(a, 14 + e, 14 + e)
    a("s_cmp_lg_u32 s2, 0")
    a("s_cbranch_scc1 kc_noh")
    a(f"s_mov_b32 s42, {H_OFF}")
    for i in range(5):
        a(f"buffer_store_dwordx2 v[{14+2*i}:{15+2*i}], v27, s[16:19], s42 offen offset:{i*512}")
    a("s_waitcnt vmcnt(0)")
    a.label("kc_noh")
    emit_ln(a, vals, 3, 24, 25, 26, 5)
    a("v_lshlrev_b32 v24, 4, v1")
    a("v_lshl_add_u32 v24, v6, 2, v24")
    for i in range(5):
        a(f"ds_write_b32 v24, v{14+2*i} offset:{i*1024}")
        a(f"ds_write_b32 v24, v{15+2*i} offset:{i*1024+8}")
    a("s_waitcnt lgkmcnt(0)")
    a("s_barrier")
    a("v_lshlrev_b32 v24, 3, v29")
    for i in range(5):
        a(f"ds_read_b64 v[{120+2*i}:{121+2*i}], v24 offset:{i*1024}")
    A = 132
    for r in range(A, A + 32):
        a(f"v_mov_b32 v{r}, 0")
    a("s_waitcnt lgkmcnt(0)")
    for i in range(5):
        for m in range(2):
            a(f"s_waitcnt vmcnt({6 + (4-i)*2 + (1-m)})")
            for r in range(4):
                base = A + m * 16
                unpack_fma(a, (32 if m == 0 else 52) + 4 * i + r,
                           [(base + 2 * r, base + 2 * r + 1), (base + 8 + 2 * r, base + 9 + 2 * r)],
                           [120 + 2 * i, 121 + 2 * i])
    RED = 5120
    a("v_lshlrev_b32 v24, 8, v29")
    a("v_lshl_add_u32 v24, v28, 5, v24")
    for mb in range(4):
        a(f"ds_write_b128 v24, v[{A+8*mb}:{A+8*mb+3}] offset:{RED+mb*64}")
        a(f"ds_write_b128 v24, v[{A+8*mb+4}:{A+8*mb+7}] offset:{RED+mb*64+16}")
    a("s_waitcnt lgkmcnt(0)")
    a("s_barrier")
    a("v_lshlrev_b32 v24, 13, v2")
    a("v_add_u32 v24, v24, v3")
    for r in range(32):
        a(f"ds_read_b32 v{A+r}, v24 offset:{RED+r*256}")
    a("s_waitcnt lgkmcnt(0)")
    a(f"v_add_f32 v25, v{A}, v{A+1}")
    for r in range(2, 32):
        a(f"v_add_f32 v25, v25, v{A+r}")
    RED2 = RED + 32768
    a("v_lshlrev_b32 v24, 2, v0")
    a(f"ds_write_b32 v24, v25 offset:{RED2}")
    a("s_waitcnt lgkmcnt(0)")
    a("s_barrier")
    GL = RED2 + 1024
    a("v_cmp_gt_u32 vcc, 36, v0")
    a("s_and_saveexec_b64 s[44:45], vcc")
    a("s_cbranch_execz kc_skipg")
    a("v_lshlrev_b32 v24, 2, v0")
    for w in range(4):
        a(f"ds_read_b32 v{A+w}, v24 offset:{RED2+w*256}")
        a(f"ds_read_b32 v{A+4+w}, v24 offset:{RED2+w*256+128}")
    a("s_waitcnt lgkmcnt(0)")
    a(f"v_add_f32 v25, v{A}, v{A+1}")
    a(f"v_add_f32 v25, v25, v{A+2}")
    a(f"v_add_f32 v25, v25, v{A+3}")
    a(f"v_add_f32 v26, v{A+4}, v{A+5}")
    a(f"v_add_f32 v26, v26, v{A+6}")
    a(f"v_add_f32 v26, v26, v{A+7}")
    bf16r(a, 25, 25)
    bf16r(a, 26, 26)
    a("v_mul_f32 v4, v25, v25")
    a("v_mul_f32 v4, v4, v25")
    a(f"v_mov_b32 v5, {f32hex(0.044715)}")
    a("v_fma_f32 v4, v4, v5, v25")
    a(f"v_mul_f32 v4, {f32hex(2.0*math.sqrt(2.0/math.pi)*LOG2E)}, v4")
    a("v_exp_f32 v4, v4")
    a("s_nop 0")
    a("v_add_f32 v4, 1.0, v4")
    a("v_rcp_f32 v4, v4")
    a("s_nop 0")
    a("v_fma_f32 v4, v4, -2.0, 2.0")
    a("v_mul_f32 v4, 0.5, v4")
    a("v_mul_f32 v4, v4, v25")
    bf16r(a, 4, 4)
    a("v_mul_f32 v4, v4, v26")
    bf16r(a, 4, 4)
    a("v_cmp_gt_u32 vcc, 32, v0")
    a("s_nop 1")
    a("v_cndmask_b32 v4, 0, v4, vcc")
    a("v_and_b32 v5, 15, v0")
    a("v_lshlrev_b32 v5, 3, v5")
    a("v_lshrrev_b32 v24, 4, v0")
    a("v_lshl_add_u32 v5, v24, 2, v5")
    a("v_lshlrev_b32 v24, 2, v0")
    a("v_cndmask_b32 v5, v24, v5, vcc")
    a(f"ds_write_b32 v5, v4 offset:{GL}")
    a.label("kc_skipg")
    a("s_mov_b64 exec, s[44:45]")
    a("s_waitcnt lgkmcnt(0)")
    a("s_barrier")
    a("v_lshlrev_b32 v24, 3, v31")
    for i in range(6):
        a(f"ds_read_b64 v[{120+2*i}:{121+2*i}], v24 offset:{GL+i*24}")
    for r in range(A, A + 16):
        a(f"v_mov_b32 v{r}, 0")
    a("s_waitcnt lgkmcnt(0)")
    a("s_waitcnt vmcnt(0)")
    for i in range(6):
        for r in range(4):
            unpack_fma(a, 72 + 4 * i + r,
                       [(A + 2 * r, A + 2 * r + 1), (A + 8 + 2 * r, A + 9 + 2 * r)],
                       [120 + 2 * i, 121 + 2 * i])
    a("v_mul_u32_u24 v24, 5120, v31")
    a("v_lshl_add_u32 v24, v98, 5, v24")
    a("v_cmp_gt_u32 vcc, 240, v0")
    a("s_and_saveexec_b64 s[44:45], vcc")
    a(f"ds_write_b128 v24, v[{A}:{A+3}] offset:{RED}")
    a(f"ds_write_b128 v24, v[{A+4}:{A+7}] offset:{RED+16}")
    a(f"ds_write_b128 v24, v[{A+8}:{A+11}] offset:{RED+2560}")
    a(f"ds_write_b128 v24, v[{A+12}:{A+15}] offset:{RED+2560+16}")
    a("s_mov_b64 exec, s[44:45]")
    a("s_waitcnt lgkmcnt(0)")
    a("s_barrier")
    a("v_lshlrev_b32 v24, 2, v0")
    for k in range(5):
        for r in range(3):
            a(f"ds_read_b32 v{A+k*3+r}, v24 offset:{RED+r*5120+k*1024}")
    a("s_waitcnt lgkmcnt(0)")
    a("s_mul_i32 s42, s40, 5120")
    a(f"s_add_u32 s42, s42, {P2_OFF}")
    for k in range(5):
        a(f"v_add_f32 v{A+k*3}, v{A+k*3}, v{A+k*3+1}")
        a(f"v_add_f32 v{A+k*3}, v{A+k*3}, v{A+k*3+2}")
        if k == 4:
            a("s_add_u32 s42, s42, 4096")
        a(f"buffer_store_dword v{A+k*3}, v24, s[16:19], s42 offen offset:{(k%4)*1024}")
    a.label("kc_done")
    a("s_endpgm")
    return name, 244


def k_d(a):
    name = "kd_kernel"
    kernel_header(a, name)
    a("s_cmp_ge_u32 s2, 20")
    a("s_cbranch_scc1 kd_done")
    load_srds(a, [("ws", 16), ("out", 28)])
    prologue_ids(a)
    a("s_movk_i32 s20, 5120")
    a("v_mul_lo_u32 v6, v2, s20")
    a("v_mul_u32_u24 v6, 24, v6")
    a("v_add_u32 v6, v6, v3")
    a("s_lshl_b32 s21, s2, 8")
    a(f"s_add_u32 s22, s21, {P2_OFF}")
    for i in range(24):
        a(f"buffer_load_dword v{16+i}, v6, s[16:19], s22 offen")
        if i < 23:
            a("s_add_u32 s22, s22, 5120")
    a(f"s_add_u32 s22, s21, {H_OFF}")
    a("buffer_load_dword v8, v3, s[16:19], s22 offen")
    a("s_waitcnt vmcnt(1)")
    a("v_add_f32 v9, v16, v17")
    for i in range(2, 24):
        a(f"v_add_f32 v9, v9, v{16+i}")
    a("v_lshlrev_b32 v10, 2, v0")
    a("ds_write_b32 v10, v9")
    a("s_waitcnt lgkmcnt(0)")
    a("s_barrier")
    a("v_cmp_gt_u32 vcc, 64, v0")
    a("s_and_saveexec_b64 s[22:23], vcc")
    a("s_cbranch_execz kd_done")
    for w in range(4):
        a(f"ds_read_b32 v{16+w}, v3 offset:{w*256}")
    a("s_waitcnt lgkmcnt(0) vmcnt(0)")
    a("v_add_f32 v9, v16, v17")
    a("v_add_f32 v9, v9, v18")
    a("v_add_f32 v9, v9, v19")
    bf16r(a, 9, 9)
    a("v_add_f32 v9, v9, v8")
    a("v_cvt_pk_bf16_f32 v9, v9, v9")
    a("v_lshlrev_b32 v10, 1, v1")
    a("s_lshl_b32 s21, s2, 7")
    a("buffer_store_short v9, v10, s[28:31], s21 offen")
    a.label("kd_done")
    a("s_endpgm")
    return name, 48


def main(out):
    a = Asm()
    hdr = open("cdna_kernels/" + NAME + ".s.ref").read().split("; Override launch geometry")[0]
    launches = [
        ("kq_kernel", 256, 5120 + 12288),
        ("ka_kernel", 256, 147456 + 768),
        ("kb_kernel", 160, 256 + 6144 + 16384 + 1024),
        ("kc_kernel", 96, 5120 + 32768 + 1024 + 256),
        ("kd_kernel", 20, 1024),
    ]
    txt = hdr
    for k, g, l in launches:
        blk = 512 if k == "ka_kernel" else 256
        txt += f"; @launch kernel={k} grid=({g},1,1) block=({blk},1,1) lds={l}\n"
    txt += '.amdgcn_target "amdgcn-amd-amdhsa--gfx950"\n.text\n'
    descs = []
    for fn in (k_q, k_a, k_b, k_c, k_d):
        n, v = fn(a)
        descs.append(kernel_desc(n, v))
    txt += a.text()
    txt += '.section .rodata,"a"\n.p2align 6\n'
    for d in descs:
        txt += ".p2align 6\n" + d
    open(out, "w").write(txt)


if __name__ == "__main__":
    main(sys.argv[1] if len(sys.argv) > 1 else "cdna_kernels/" + NAME + ".s")
```

```python
class Asm:
    def __init__(self):
        self.lines = []
        self.lab = 0

    def __call__(self, s=""):
        for ln in s.split("\n"):
            self.lines.append("    " + ln.strip() if ln.strip() and not ln.strip().endswith(":") else ln.strip())

    def raw(self, s):
        self.lines.append(s)

    def label(self, name):
        self.lines.append(name + ":")

    def newlabel(self, base="L"):
        self.lab += 1
        return f"{base}_{self.lab}"

    def text(self):
        return "\n".join(self.lines) + "\n"


KARG = dict(x=0, k=8, v=16, wq=24, wo=32, bx=40, wg=48, wu=56, wd=64, out=72, dbg=80, ws=88)
SIZE = dict(x=2560, k=201326592, v=201326592, wq=640 * 6144 * 2, wo=6144 * 640 * 2,
            wg=640 * 1536 * 2, wu=640 * 1536 * 2, wd=1536 * 640 * 2, out=2560, dbg=256,
            ws=805306368)


def load_srds(a, spec):
    for name, sb in spec:
        a(f"s_load_dwordx2 s[{sb}:{sb+1}], s[0:1], {KARG[name]}")
    a("s_waitcnt lgkmcnt(0)")
    for name, sb in spec:
        a(f"s_and_b32 s{sb+1}, s{sb+1}, 0xffff")
        a(f"s_mov_b32 s{sb+2}, {SIZE[name]}")
        a(f"s_mov_b32 s{sb+3}, 0x00020000")


def bf16r(a, d, s):
    a(f"v_cvt_pk_bf16_f32 v{d}, v{s}, v{s}")
    a(f"v_lshlrev_b32 v{d}, 16, v{d}")


def wave_sum(a, v, vlane4, taddr, ttmp):
    for mask in (1, 2, 4, 8, 16, 32):
        a(f"v_xor_b32 v{taddr}, {mask*4}, v{vlane4}")
        a(f"ds_bpermute_b32 v{ttmp}, v{taddr}, v{v}")
        a("s_waitcnt lgkmcnt(0)")
        a(f"v_add_f32 v{v}, v{v}, v{ttmp}")


def wave_sum_dpp(a, v, sbase):
    for r in (1, 2, 4, 8):
        a("s_nop 1")
        a(f"v_add_f32_dpp v{v}, v{v}, v{v} row_ror:{r} row_mask:0xf bank_mask:0xf")
    a("s_nop 0")
    for i in range(4):
        a(f"v_readlane_b32 s{sbase+i}, v{v}, {16*i}")
    a("s_nop 1")
    a(f"v_mov_b32 v{v}, s{sbase}")
    a(f"v_add_f32 v{v}, s{sbase+1}, v{v}")
    a(f"v_add_f32 v{v}, s{sbase+2}, v{v}")
    a(f"v_add_f32 v{v}, s{sbase+3}, v{v}")


def emit_ln(a, vals, vlane4, t0, t1, t2, t3, sbase=None):
    global wave_sum
    if sbase is not None:
        ws_old = wave_sum
        wave_sum = lambda a_, v, l4, x, y: wave_sum_dpp(a_, v, sbase)
        try:
            _emit_ln(a, vals, vlane4, t0, t1, t2, t3)
        finally:
            wave_sum = ws_old
    else:
        _emit_ln(a, vals, vlane4, t0, t1, t2, t3)


def _emit_ln(a, vals, vlane4, t0, t1, t2, t3):
    a(f"v_add_f32 v{t0}, v{vals[0]}, v{vals[1]}")
    for v in vals[2:]:
        a(f"v_add_f32 v{t0}, v{t0}, v{v}")
    wave_sum(a, t0, vlane4, t2, t3)
    a(f"v_mul_f32 v{t0}, {1.0/640.0!r}, v{t0}")
    a(f"v_sub_f32 v{t2}, v{vals[0]}, v{t0}")
    a(f"v_mul_f32 v{t1}, v{t2}, v{t2}")
    for v in vals[1:]:
        a(f"v_sub_f32 v{t2}, v{v}, v{t0}")
        a(f"v_fmac_f32 v{t1}, v{t2}, v{t2}")
    wave_sum(a, t1, vlane4, t2, t3)
    a(f"v_mul_f32 v{t1}, {1.0/640.0!r}, v{t1}")
    bf16r(a, t0, t0)
    bf16r(a, t1, t1)
    a(f"v_add_f32 v{t1}, {1e-5!r}, v{t1}")
    bf16r(a, t1, t1)
    a(f"v_sqrt_f32 v{t1}, v{t1}")
    a("s_nop 0")
    bf16r(a, t1, t1)
    a(f"v_rcp_f32 v{t1}, v{t1}")
    a("s_nop 0")
    for v in vals:
        a(f"v_sub_f32 v{v}, v{v}, v{t0}")
        bf16r(a, v, v)
        a(f"v_mul_f32 v{v}, v{v}, v{t1}")
        bf16r(a, v, v)


def kernel_header(a, name):
    a.raw(f".globl {name}")
    a.raw(".p2align 8")
    a.raw(f".type {name},@function")
    a.label(name)


def kernel_desc(name, vgpr, sgpr=96):
    acc = (vgpr + 3) // 4 * 4
    return f""".amdhsa_kernel {name}
  .amdhsa_next_free_vgpr {vgpr}
  .amdhsa_next_free_sgpr {sgpr}
  .amdhsa_accum_offset {acc}
  .amdhsa_group_segment_fixed_size 0
  .amdhsa_kernarg_size 96
  .amdhsa_user_sgpr_count 2
  .amdhsa_user_sgpr_kernarg_segment_ptr 1
  .amdhsa_system_sgpr_workgroup_id_x 1
.end_amdhsa_kernel
"""
```

```python
import math
import sys
from common import *

NAME = "sequential_preLN__sliding_block_cached__geglu_ffn__decode"
Q_OFF = 0
ACC1_OFF = 32768
ACC2_OFF = 40960
PART_OFF = 65536
NSPLIT = 8
DEBUG = False
LOG2E = math.log2(math.e)
SCALE = 192 ** -0.5


def f32hex(x):
    import struct
    return "0x%08x" % struct.unpack("<I", struct.pack("<f", x))[0]


def unpack_fma(a, wreg, accs, xs):
    a(f"v_lshlrev_b32 v4, 16, v{wreg}")
    a(f"v_and_b32 v5, 0xffff0000, v{wreg}")
    for (lo, hi), x in zip(accs, xs):
        a(f"v_fmac_f32 v{lo}, v{x}, v4")
        a(f"v_fmac_f32 v{hi}, v{x}, v5")


def prologue_ids(a):
    a("v_and_b32 v1, 63, v0")
    a("v_lshrrev_b32 v2, 6, v0")
    a("v_lshlrev_b32 v3, 2, v1")


QP_OFF = 4 << 20


def k_q(a):
    name = "kq_kernel"
    kernel_header(a, name)
    a("s_cmp_ge_u32 s2, 256")
    a("s_cbranch_scc1 kq_done")
    load_srds(a, [("x", 8), ("wq", 12), ("ws", 16)])
    prologue_ids(a)
    a("s_lshr_b32 s20, s2, 3")
    a("s_and_b32 s21, s2, 7")
    a("v_and_b32 v6, 1, v2")
    a("v_mul_u32_u24 v7, 1280, v6")
    a("v_add_u32 v7, v7, v3")
    for i in range(5):
        a(f"buffer_load_dword v{8+i}, v7, s[8:11], 0 offen offset:{i*256}")
    a("v_lshrrev_b32 v28, 5, v1")
    a("v_and_b32 v29, 31, v1")
    a("v_lshl_add_u32 v30, v2, 1, v28")
    a("v_mul_u32_u24 v31, 12288, v30")
    a("v_mul_u32_u24 v27, 12, v29")
    a("v_add_u32 v31, v31, v27")
    a("s_mul_i32 s22, s20, 384")
    a("s_mul_i32 s23, s21, 983040")
    a("s_add_u32 s22, s22, s23")
    WQ = 32
    for i in range(10):
        a(f"buffer_load_dwordx3 v[{WQ+4*i}:{WQ+4*i+2}], v31, s[12:15], s22 offen nt")
        if i < 9:
            a("s_add_u32 s22, s22, 98304")
    a("s_waitcnt vmcnt(10)")
    vals = list(range(14, 24))
    for i in range(5):
        a(f"v_lshlrev_b32 v{14+2*i}, 16, v{8+i}")
        a(f"v_and_b32 v{15+2*i}, 0xffff0000, v{8+i}")
    emit_ln(a, vals, 3, 24, 25, 26, 27, sbase=40)
    a("v_lshlrev_b32 v24, 4, v1")
    a("v_lshl_add_u32 v24, v6, 2, v24")
    for i in range(5):
        a(f"ds_write_b32 v24, v{14+2*i} offset:{i*1024}")
        a(f"ds_write_b32 v24, v{15+2*i} offset:{i*1024+8}")
    a("s_waitcnt lgkmcnt(0)")
    a("s_barrier")
    a("s_mul_i32 s23, s21, 640")
    a("v_lshlrev_b32 v24, 3, v30")
    a("v_add_u32 v24, s23, v24")
    XN = 72
    for i in range(10):
        a(f"ds_read_b64 v[{XN+2*i}:{XN+2*i+1}], v24 offset:{i*64}")
    A = 92
    for r in range(A, A + 12):
        a(f"v_mov_b32 v{r}, 0")
    a("s_waitcnt lgkmcnt(0)")
    for i in range(10):
        a(f"s_waitcnt vmcnt({9-i})")
        for r in range(3):
            unpack_fma(a, WQ + 4 * i + r, [(A + 2 * r, A + 1 + 2 * r), (A + 6 + 2 * r, A + 7 + 2 * r)],
                       [XN + 2 * i, XN + 2 * i + 1])
    a("v_mul_u32_u24 v24, 1536, v30")
    a("v_mul_u32_u24 v25, 24, v29")
    a("v_add_u32 v24, v24, v25")
    for b in range(2):
        for k in range(3):
            a(f"ds_write_b64 v24, v[{A+6*b+2*k}:{A+6*b+2*k+1}] offset:{5120+b*768+k*8}")
    a("s_waitcnt lgkmcnt(0)")
    a("s_barrier")
    a("v_lshlrev_b32 v24, 2, v0")
    a("s_mul_i32 s22, s2, 1536")
    a(f"s_add_u32 s22, s22, {QP_OFF}")
    for part in range(2):
        if part == 1:
            a("v_cmp_gt_u32 vcc, 128, v0")
            a("s_and_saveexec_b64 s[24:25], vcc")
            a("s_cbranch_execz kq_done")
        for w in range(8):
            a(f"ds_read_b32 v{32+w}, v24 offset:{5120+w*1536+part*1024}")
        a("s_waitcnt lgkmcnt(0)")
        a("v_add_f32 v32, v32, v33")
        for w in range(2, 8):
            a(f"v_add_f32 v32, v32, v{32+w}")
        a(f"buffer_store_dword v32, v24, s[16:19], s22 offen offset:{part*1024}")
    a.label("kq_done")
    a("s_endpgm")
    return name, 104


def k_a(a):
    name = "ka_kernel"
    kernel_header(a, name)
    a("s_cmp_ge_u32 s2, 256")
    a("s_cbranch_scc1 ka_done")
    load_srds(a, [("k", 8), ("v", 12), ("ws", 16)])
    prologue_ids(a)
    a("v_and_b32 v6, 15, v1")
    a("v_lshrrev_b32 v7, 4, v1")
    a("v_readfirstlane_b32 s33, v2")
    a("s_and_b32 s20, s2, 7")
    a("s_lshl_b32 s20, s20, 2")
    a("s_lshr_b32 s21, s2, 3")
    a("s_and_b32 s22, s21, 3")
    a("s_add_u32 s20, s20, s22")
    a("s_lshr_b32 s21, s2, 5")
    AUX = 147456
    a("s_lshr_b32 s22, s33, 2")
    a("s_and_b32 s23, s33, 3")
    a("s_mul_i32 s30, s20, 12288")
    a("s_mul_i32 s31, s22, 768")
    a("s_add_u32 s30, s30, s31")
    a(f"s_add_u32 s30, s30, {QP_OFF}")
    QR = 96
    for sp in range(8):
        for k in range(3):
            a(f"buffer_load_dword v{QR+sp*3+k}, v3, s[16:19], s30 offen offset:{k*256}")
        if sp < 7:
            a("s_add_u32 s30, s30, 1536")
    for i in range(6):
        a(f"v_add_u32 v10, {64*i}, v1")
        a("v_mul_u32_u24 v11, 2731, v10")
        a("v_lshrrev_b32 v11, 16, v11")
        a("v_mul_u32_u24 v12, 24, v11")
        a("v_sub_u32 v13, v10, v12")
        a("v_lshrrev_b32 v11, 1, v11")
        a("v_and_b32 v11, 3, v11")
        a("v_lshlrev_b32 v11, 1, v11")
        a("v_xor_b32 v13, v13, v11")
        a("v_add_u32 v13, v13, v12")
        a(f"v_add_u32 v13, {64-64*i}, v13" if i == 0 else f"v_subrev_u32 v13, {64*i-64}, v13")
        a(f"v_lshlrev_b32 v{16+i}, 4, v13")
    a("s_lshl_b32 s27, s22, 5")
    a("s_add_u32 s27, s27, s20")
    a("s_mul_i32 s24, s27, 3145728")
    a("s_mul_i32 s25, s21, 98304")
    a("s_add_u32 s24, s24, s25")
    a("s_mul_i32 s25, s23, 24576")
    a("s_add_u32 s24, s24, s25")
    a("s_add_u32 s24, s24, 2358272")
    a("s_mul_i32 s34, s33, 18432")

    def dma(tile):
        srd = 8 if tile < 4 else 12
        t = tile % 4
        slot = tile % 3
        a(f"s_add_u32 s26, s34, {slot*6144}")
        a("s_mov_b32 m0, s26")
        a(f"s_add_u32 s25, s24, {t*6144}")
        for i in range(4):
            a(f"buffer_load_dwordx4 v{16+i}, s[{srd}:{srd+3}], s25 offen offset:{i*1024} nt lds")
        a(f"s_add_u32 s26, s34, {slot*6144+4096}")
        a("s_mov_b32 m0, s26")
        a(f"s_add_u32 s25, s24, {t*6144+4096}")
        for i in range(4, 6):
            a(f"buffer_load_dwordx4 v{16+i}, s[{srd}:{srd+3}], s25 offen offset:{(i-4)*1024} nt lds")

    for t in range(3):
        dma(t)
    a("v_mul_u32_u24 v15, 18432, v2")
    a("v_lshrrev_b32 v22, 1, v6")
    a("v_and_b32 v22, 3, v22")
    a("v_lshlrev_b32 v22, 1, v22")
    a("v_mul_u32_u24 v23, 24, v6")
    for m in range(6):
        a(f"v_add_u32 v30, {4*m}, v7")
        a("v_xor_b32 v30, v30, v22")
        a("v_add_u32 v30, v30, v23")
        a(f"v_lshl_add_u32 v{24+m}, v30, 4, v15")
    a("v_lshrrev_b32 v10, 2, v6")
    a("v_and_b32 v11, 3, v6")
    a("v_and_b32 v12, 1, v7")
    a("v_lshrrev_b32 v13, 1, v7")
    a("v_mul_u32_u24 v14, 6144, v13")
    a("v_add_u32 v14, v14, v15")
    a("v_lshl_add_u32 v14, v11, 3, v14")
    for half in range(2):
        a("v_lshlrev_b32 v30, 3, v12")
        a(f"v_add_u32 v30, {half*4}, v30")
        a("v_add_u32 v30, v30, v10")
        a("v_lshrrev_b32 v31, 1, v30")
        a("v_and_b32 v31, 3, v31")
        a("v_mul_u32_u24 v30, 384, v30")
        a("v_add_u32 v30, v30, v14")
        for e in range(4):
            a(f"v_xor_b32 v40, {e}, v31")
            a(f"v_lshl_add_u32 v{32+half*4+e}, v40, 5, v30")
    a(f"s_mov_b32 s28, {f32hex(SCALE)}")
    a(f"s_mov_b32 s29, {f32hex(LOG2E)}")
    a("v_lshlrev_b32 v41, 9, v2")
    a(f"v_add_u32 v41, {AUX}, v41")
    a("v_lshl_add_u32 v42, v1, 1, v41")
    a("v_lshl_add_u32 v43, v7, 4, v41")
    a("s_waitcnt vmcnt(18)")
    for k in range(3):
        for sp in range(1, 8):
            a(f"v_add_f32 v{QR+k}, v{QR+k}, v{QR+sp*3+k}")
        a(f"v_cvt_pk_bf16_f32 v{QR+k}, v{QR+k}, v{QR+k}")
        a(f"ds_write_b16 v42, v{QR+k} offset:{k*128}")
    a("s_waitcnt lgkmcnt(0)")
    Q = 64
    for j in range(6):
        a(f"ds_read_b128 v[{Q+4*j}:{Q+4*j+3}], v43 offset:{j*64}")
    TB = 96
    D = 44
    for t in range(4):
        a("s_waitcnt vmcnt(12)")
        slot = t % 3
        for m in range(6):
            a(f"ds_read_b128 v[{TB+4*m}:{TB+4*m+3}], v{24+m} offset:{slot*6144}")
        a("s_waitcnt lgkmcnt(0)")
        dma(t + 3)
        for j in range(6):
            c = "0" if j == 0 else f"v[{D+4*t}:{D+4*t+3}]"
            a(f"v_mfma_f32_16x16x32_bf16 v[{D+4*t}:{D+4*t+3}], v[{Q+4*j}:{Q+4*j+3}], v[{TB+4*j}:{TB+4*j+3}], {c}")
        a("s_nop 3")
    a("s_nop 7")
    for tt in range(4):
        s_ = D + 4 * tt
        bf16r(a, s_, s_)
        a(f"v_mul_f32 v{s_}, s28, v{s_}")
        bf16r(a, s_, s_)
    a(f"v_max_f32 v11, v{D}, v{D+4}")
    a(f"v_max3_f32 v11, v11, v{D+8}, v{D+12}")
    for r in (1, 2, 4, 8):
        a("s_nop 1")
        a(f"v_max_f32_dpp v11, v11, v11 row_ror:{r} row_mask:0xf bank_mask:0xf")
    for tt in range(4):
        s_ = D + 4 * tt
        a(f"v_sub_f32 v{s_}, v{s_}, v11")
        a(f"v_mul_f32 v{s_}, s29, v{s_}")
        a(f"v_exp_f32 v{s_}, v{s_}")
    a("s_nop 0")
    a(f"v_add_f32 v12, v{D}, v{D+4}")
    a(f"v_add_f32 v12, v12, v{D+8}")
    a(f"v_add_f32 v12, v12, v{D+12}")
    a(f"v_mov_b32 v30, v{D}")
    for gg in range(1, 4):
        a(f"v_cmp_eq_u32 vcc, {gg}, v7")
        a("s_nop 1")
        a(f"v_cndmask_b32 v30, v30, v{D+4*gg}, vcc")
    a("v_cvt_pk_bf16_f32 v30, v30, v30")
    a("ds_write_b16 v42, v30 offset:384")
    for r in (1, 2, 4, 8):
        a("s_nop 1")
        a(f"v_add_f32_dpp v12, v12, v12 row_ror:{r} row_mask:0xf bank_mask:0xf")
    a("s_waitcnt lgkmcnt(0)")
    PA = 60
    a(f"ds_read_b128 v[{PA}:{PA+3}], v43 offset:384")
    a(f"ds_read_b128 v[64:67], v43 offset:{384+64}")
    O = 120
    for u in range(2):
        a(f"s_waitcnt vmcnt({6 if u == 0 else 0})")
        pa = PA if u == 0 else 64
        for q4 in range(3):
            for e in range(4):
                off = q4 * 128 + (6144 if u == 0 else 0)
                a(f"ds_read_b64_tr_b16 v[{TB+4*e}:{TB+4*e+1}], v{32+e} offset:{off}")
                a(f"ds_read_b64_tr_b16 v[{TB+4*e+2}:{TB+4*e+3}], v{36+e} offset:{off}")
            a("s_waitcnt lgkmcnt(0)")
            for e in range(4):
                dt = q4 * 4 + e
                c = "0" if u == 0 else f"v[{O+4*dt}:{O+4*dt+3}]"
                a(f"v_mfma_f32_16x16x32_bf16 v[{O+4*dt}:{O+4*dt+3}], v[{pa}:{pa+3}], v[{TB+4*e}:{TB+4*e+3}], {c}")
            a("s_nop 3")
        if u == 0:
            dma(7)
    a("s_nop 7")
    a("v_mul_u32_u24 v13, 18432, v2")
    a("v_lshl_add_u32 v14, v1, 2, v13")
    a("v_mov_b32 v18, v11")
    a("v_mov_b32 v19, v12")
    a("v_cmp_gt_u32 vcc, 16, v1")
    a("s_and_saveexec_b64 s[30:31], vcc")
    for dt in range(12):
        a(f"ds_write_b32 v14, v{O+4*dt} offset:{dt*64}")
    a("ds_write_b64 v13, v[18:19] offset:768")
    a("s_mov_b64 exec, s[30:31]")
    a("s_waitcnt lgkmcnt(0)")
    a("s_barrier")
    a("v_and_b32 v16, 255, v0")
    a("v_lshrrev_b32 v15, 8, v0")
    a("v_mul_u32_u24 v18, 73728, v15")
    a("v_lshl_add_u32 v17, v16, 2, v18")
    for w in range(4):
        a(f"ds_read_b64 v[{20+2*w}:{21+2*w}], v18 offset:{w*18432+768}")
        a(f"ds_read_b32 v{30+w}, v17 offset:{w*18432}")
    a("s_waitcnt lgkmcnt(0)")
    a("v_max_f32 v34, v20, v22")
    a("v_max3_f32 v34, v34, v24, v26")
    for w in range(4):
        a(f"v_sub_f32 v{20+2*w}, v{20+2*w}, v34")
        a(f"v_mul_f32 v{20+2*w}, s29, v{20+2*w}")
        a(f"v_exp_f32 v{20+2*w}, v{20+2*w}")
    a("s_nop 0")
    a("v_mul_f32 v35, v20, v21")
    a("v_mul_f32 v36, v20, v30")
    for w in range(1, 4):
        a(f"v_fmac_f32 v35, v{20+2*w}, v{21+2*w}")
        a(f"v_fmac_f32 v36, v{20+2*w}, v{30+w}")
    a("v_cmp_eq_u32 vcc, 192, v16")
    a("s_nop 1")
    a("v_cndmask_b32 v36, v36, v34, vcc")
    a("v_cmp_eq_u32 vcc, 193, v16")
    a("s_nop 1")
    a("v_cndmask_b32 v36, v36, v35, vcc")
    a("v_cmp_gt_u32 vcc, 194, v16")
    a("s_and_saveexec_b64 s[30:31], vcc")
    a("s_cbranch_execz ka_done")
    a("s_lshl_b32 s22, s20, 3")
    a("s_add_u32 s22, s22, s21")
    a("s_lshl_b32 s22, s22, 10")
    a(f"s_add_u32 s22, s22, {PART_OFF}")
    a("v_lshlrev_b32 v17, 18, v15")
    a("v_lshl_add_u32 v17, v16, 2, v17")
    a("buffer_store_dword v36, v17, s[16:19], s22 offen")
    a.label("ka_done")
    a("s_endpgm")
    return name, 168


P1_OFF = 1 << 20
P2_OFF = 2 << 20
H_OFF = 3 << 20


def k_b(a):
    name = "kb_kernel"
    kernel_header(a, name)
    a("s_cmp_ge_u32 s2, 160")
    a("s_cbranch_scc1 kb_done")
    load_srds(a, [("wo", 12), ("ws", 16)])
    prologue_ids(a)
    a("s_and_b32 s20, s2, 7")
    a("s_lshr_b32 s21, s2, 3")
    a("v_lshrrev_b32 v6, 5, v1")
    a("v_and_b32 v7, 31, v1")
    a("v_lshlrev_b32 v6, 18, v6")
    a("v_lshl_add_u32 v6, v7, 10, v6")
    a("s_lshl_b32 s22, s20, 15")
    a(f"s_add_u32 s22, s22, {PART_OFF}")
    a("buffer_load_dwordx2 v[8:9], v6, s[16:19], s22 offen offset:768")
    O = 64
    for k in range(3):
        a(f"v_add_u32 v10, {256*k}, v0")
        a("v_mul_u32_u24 v11, 21846, v10")
        a("v_lshrrev_b32 v11, 22, v11")
        a("v_mul_u32_u24 v12, 192, v11")
        a("v_sub_u32 v12, v10, v12")
        a(f"v_lshlrev_b32 v{13+k}, 13, v11")
        a(f"v_lshl_add_u32 v{13+k}, v12, 2, v{13+k}")
        a(f"v_lshlrev_b32 v{16+k}, 5, v11")
    a("s_add_u32 s23, s22, 4096")
    a("s_add_u32 s24, s22, 262144")
    a("s_add_u32 s25, s24, 4096")
    for k in range(3):
        for b in range(2):
            for sp in range(8):
                sreg = 22 + b * 2 + (sp >= 4)
                a(f"buffer_load_dword v{O+(k*2+b)*8+sp}, v{13+k}, s[16:19], s{sreg} offen offset:{(sp%4)*1024}")
    a("v_and_b32 v28, 3, v0")
    a("v_lshrrev_b32 v29, 2, v0")
    a("v_mul_u32_u24 v30, 1280, v29")
    a("v_lshl_add_u32 v30, v28, 4, v30")
    a("s_mul_i32 s26, s20, 983040")
    a("s_lshl_b32 s27, s21, 6")
    a("s_add_u32 s26, s26, s27")
    W = 112
    for i in range(12):
        a(f"buffer_load_dwordx4 v[{W+4*i}:{W+4*i+3}], v30, s[12:15], s26 offen nt")
        if i < 11:
            a("s_add_u32 s26, s26, 81920")
    a(f"s_mov_b32 s29, {f32hex(LOG2E)}")
    a("s_waitcnt vmcnt(60)")
    a("v_mov_b32 v10, v8")
    for r in (1, 2, 4):
        a("s_nop 1")
        a(f"v_max_f32_dpp v10, v10, v10 row_shr:{r} row_mask:0xf bank_mask:0xf" if False else
          f"ds_swizzle_b32 v11, v10 offset:{(r<<10)|0x1f}")
        a("s_waitcnt lgkmcnt(0)")
        a("v_max_f32 v10, v10, v11")
    a("v_sub_f32 v8, v8, v10")
    a("v_mul_f32 v8, s29, v8")
    a("v_exp_f32 v8, v8")
    a("s_nop 0")
    a("v_mul_f32 v9, v8, v9")
    for r in (1, 2, 4):
        a(f"ds_swizzle_b32 v11, v9 offset:{(r<<10)|0x1f}")
        a("s_waitcnt lgkmcnt(0)")
        a("v_add_f32 v9, v9, v11")
    a("v_rcp_f32 v9, v9")
    a("s_nop 0")
    a("v_mul_f32 v8, v8, v9")
    a("ds_write_b32 v3, v8")
    a("s_waitcnt lgkmcnt(0)")
    a("s_barrier")
    a("s_waitcnt vmcnt(12)")
    OL = 256
    for k in range(3):
        for b in range(2):
            a(f"ds_read_b128 v[20:23], v{16+k} offset:{b*128}")
            a(f"ds_read_b128 v[24:27], v{16+k} offset:{b*128+16}")
            a("s_waitcnt lgkmcnt(0)")
            base = O + (k * 2 + b) * 8
            a(f"v_mul_f32 v{8+b}, v20, v{base}")
            for sp in range(1, 8):
                a(f"v_fmac_f32 v{8+b}, v{20+sp}, v{base+sp}")
            bf16r(a, 8 + b, 8 + b)
        a("v_lshlrev_b32 v10, 3, v0")
        a(f"ds_write_b64 v10, v[8:9] offset:{OL+k*2048}")
    a("s_waitcnt lgkmcnt(0)")
    a("s_barrier")
    a("v_lshlrev_b32 v24, 3, v29")
    X = 64
    for i in range(12):
        a(f"ds_read_b64 v[{X+2*i}:{X+2*i+1}], v24 offset:{OL+i*512}")
    A = 96
    for r in range(A, A + 16):
        a(f"v_mov_b32 v{r}, 0")
    a("s_waitcnt lgkmcnt(0)")
    for i in range(12):
        a(f"s_waitcnt vmcnt({11-i})")
        for r in range(4):
            unpack_fma(a, W + 4 * i + r, [(A + 2 * r, A + 1 + 2 * r), (A + 8 + 2 * r, A + 9 + 2 * r)],
                       [X + 2 * i, X + 2 * i + 1])
    RED = 256 + 6144
    a("v_lshlrev_b32 v24, 8, v29")
    a("v_lshl_add_u32 v24, v28, 5, v24")
    a(f"ds_write_b128 v24, v[{A}:{A+3}] offset:{RED}")
    a(f"ds_write_b128 v24, v[{A+4}:{A+7}] offset:{RED+16}")
    a(f"ds_write_b128 v24, v[{A+8}:{A+11}] offset:{RED+128}")
    a(f"ds_write_b128 v24, v[{A+12}:{A+15}] offset:{RED+128+16}")
    a("s_waitcnt lgkmcnt(0)")
    a("s_barrier")
    a("v_lshlrev_b32 v24, 12, v2")
    a("v_add_u32 v24, v24, v3")
    for r in range(16):
        a(f"ds_read_b32 v{X+r}, v24 offset:{RED+r*256}")
    a("s_waitcnt lgkmcnt(0)")
    a(f"v_add_f32 v25, v{X}, v{X+1}")
    for r in range(2, 16):
        a(f"v_add_f32 v25, v25, v{X+r}")
    RED2 = RED + 16384
    a("v_lshlrev_b32 v24, 2, v0")
    a(f"ds_write_b32 v24, v25 offset:{RED2}")
    a("s_waitcnt lgkmcnt(0)")
    a("s_barrier")
    a("v_cmp_gt_u32 vcc, 64, v0")
    a("s_and_saveexec_b64 s[22:23], vcc")
    a("s_cbranch_execz kb_done")
    for w in range(4):
        a(f"ds_read_b32 v{X+w}, v3 offset:{RED2+w*256}")
    a("s_waitcnt lgkmcnt(0)")
    a(f"v_add_f32 v25, v{X}, v{X+1}")
    a(f"v_add_f32 v25, v25, v{X+2}")
    a(f"v_add_f32 v25, v25, v{X+3}")
    a("v_lshrrev_b32 v26, 5, v1")
    a("v_mul_u32_u24 v26, 2560, v26")
    a("v_and_b32 v27, 31, v1")
    a("v_lshl_add_u32 v26, v27, 2, v26")
    a("s_mul_i32 s27, s20, 5120")
    a("s_lshl_b32 s28, s21, 7")
    a("s_add_u32 s27, s27, s28")
    a(f"s_add_u32 s27, s27, {P1_OFF}")
    a("buffer_store_dword v25, v26, s[16:19], s27 offen")
    a.label("kb_done")
    a("s_endpgm")
    return name, 160


def k_c(a):
    name = "kc_kernel"
    kernel_header(a, name)
    a("s_cmp_ge_u32 s2, 96")
    a("s_cbranch_scc1 kc_done")
    load_srds(a, [("x", 8), ("wg", 12), ("ws", 16), ("wu", 20), ("wd", 24)])
    prologue_ids(a)
    a("s_and_b32 s40, s2, 7")
    a("s_mul_i32 s40, s40, 12")
    a("s_lshr_b32 s41, s2, 3")
    a("s_add_u32 s40, s40, s41")
    a("v_and_b32 v6, 1, v2")
    a("v_mul_u32_u24 v7, 1280, v6")
    a("v_add_u32 v7, v7, v3")
    a("v_lshlrev_b32 v27, 1, v7")
    a("v_readfirstlane_b32 s48, v2")
    a("s_cmp_ge_u32 s48, 2")
    a("s_cbranch_scc1 kc_noload")
    for i in range(5):
        a(f"buffer_load_dword v{8+i}, v7, s[8:11], 0 offen offset:{i*256}")
    PP = 164
    a(f"s_mov_b32 s42, {P1_OFF}")
    for g in range(8):
        for i in range(5):
            a(f"buffer_load_dwordx2 v[{PP+g*10+2*i}:{PP+g*10+2*i+1}], v27, s[16:19], s42 offen offset:{i*512}")
        if g < 7:
            a("s_add_u32 s42, s42, 5120")
    a.label("kc_noload")
    a("s_barrier")
    a("v_and_b32 v28, 1, v0")
    a("v_lshrrev_b32 v29, 1, v0")
    a("v_mul_u32_u24 v30, 3072, v29")
    a("v_lshl_add_u32 v30, v28, 4, v30")
    a("s_lshl_b32 s43, s40, 5")
    for i in range(5):
        a(f"buffer_load_dwordx4 v[{32+4*i}:{35+4*i}], v30, s[12:15], s43 offen nt")
        a(f"buffer_load_dwordx4 v[{52+4*i}:{55+4*i}], v30, s[20:23], s43 offen nt")
        if i < 4:
            a("s_add_u32 s43, s43, 393216")
    a("v_mul_u32_u24 v31, 205, v0")
    a("v_lshrrev_b32 v31, 14, v31")
    a("v_mul_u32_u24 v98, 80, v31")
    a("v_sub_u32 v98, v0, v98")
    a("v_mul_u32_u24 v99, 1280, v31")
    a("v_lshl_add_u32 v99, v98, 4, v99")
    a("s_mul_i32 s43, s40, 20480")
    for i in range(6):
        a(f"buffer_load_dwordx4 v[{72+4*i}:{75+4*i}], v99, s[24:27], s43 offen nt")
        if i < 5:
            a("s_add_u32 s43, s43, 3840")
    a("s_cmp_ge_u32 s48, 2")
    a("s_cbranch_scc1 kc_noln")
    a("s_waitcnt vmcnt(16)")
    vals = list(range(14, 24))
    for i in range(5):
        a(f"v_lshlrev_b32 v{14+2*i}, 16, v{8+i}")
        a(f"v_and_b32 v{15+2*i}, 0xffff0000, v{8+i}")
    for e in range(10):
        for g in range(1, 8):
            a(f"v_add_f32 v{PP+e}, v{PP+e}, v{PP+g*10+e}")
        bf16r(a, PP + e, PP + e)
        a(f"v_add_f32 v{14+e}, v{14+e}, v{PP+e}")
        bf16r(a, 14 + e, 14 + e)
    a("s_cmp_lg_u32 s2, 0")
    a("s_cbranch_scc1 kc_noh")
    a(f"s_mov_b32 s42, {H_OFF}")
    for i in range(5):
        a(f"buffer_store_dwordx2 v[{14+2*i}:{15+2*i}], v27, s[16:19], s42 offen offset:{i*512}")
    a("s_waitcnt vmcnt(0)")
    a.label("kc_noh")
    emit_ln(a, vals, 3, 24, 25, 26, 5, sbase=52)
    a("v_lshlrev_b32 v24, 4, v1")
    a("v_lshl_add_u32 v24, v6, 2, v24")
    for i in range(5):
        a(f"ds_write_b32 v24, v{14+2*i} offset:{i*1024}")
        a(f"ds_write_b32 v24, v{15+2*i} offset:{i*1024+8}")
    a.label("kc_noln")
    a("s_waitcnt lgkmcnt(0)")
    a("s_barrier")
    a("v_lshlrev_b32 v24, 3, v29")
    for i in range(5):
        a(f"ds_read_b64 v[{120+2*i}:{121+2*i}], v24 offset:{i*1024}")
    A = 132
    for r in range(A, A + 32):
        a(f"v_mov_b32 v{r}, 0")
    a("s_waitcnt lgkmcnt(0)")
    for i in range(5):
        for m in range(2):
            a(f"s_waitcnt vmcnt({6 + (4-i)*2 + (1-m)})")
            for r in range(4):
                base = A + m * 16
                unpack_fma(a, (32 if m == 0 else 52) + 4 * i + r,
                           [(base + 2 * r, base + 2 * r + 1), (base + 8 + 2 * r, base + 9 + 2 * r)],
                           [120 + 2 * i, 121 + 2 * i])
    RED = 5120
    a("v_lshlrev_b32 v24, 8, v29")
    a("v_lshl_add_u32 v24, v28, 5, v24")
    for mb in range(4):
        a(f"ds_write_b128 v24, v[{A+8*mb}:{A+8*mb+3}] offset:{RED+mb*64}")
        a(f"ds_write_b128 v24, v[{A+8*mb+4}:{A+8*mb+7}] offset:{RED+mb*64+16}")
    a("s_waitcnt lgkmcnt(0)")
    a("s_barrier")
    a("v_lshlrev_b32 v24, 13, v2")
    a("v_add_u32 v24, v24, v3")
    for r in range(32):
        a(f"ds_read_b32 v{A+r}, v24 offset:{RED+r*256}")
    a("s_waitcnt lgkmcnt(0)")
    a(f"v_add_f32 v25, v{A}, v{A+1}")
    for r in range(2, 32):
        a(f"v_add_f32 v25, v25, v{A+r}")
    RED2 = RED + 32768
    a("v_lshlrev_b32 v24, 2, v0")
    a(f"ds_write_b32 v24, v25 offset:{RED2}")
    a("s_waitcnt lgkmcnt(0)")
    a("s_barrier")
    GL = RED2 + 1024
    a("v_cmp_gt_u32 vcc, 36, v0")
    a("s_and_saveexec_b64 s[44:45], vcc")
    a("s_cbranch_execz kc_skipg")
    a("v_lshlrev_b32 v24, 2, v0")
    for w in range(4):
        a(f"ds_read_b32 v{A+w}, v24 offset:{RED2+w*256}")
        a(f"ds_read_b32 v{A+4+w}, v24 offset:{RED2+w*256+128}")
    a("s_waitcnt lgkmcnt(0)")
    a(f"v_add_f32 v25, v{A}, v{A+1}")
    a(f"v_add_f32 v25, v25, v{A+2}")
    a(f"v_add_f32 v25, v25, v{A+3}")
    a(f"v_add_f32 v26, v{A+4}, v{A+5}")
    a(f"v_add_f32 v26, v26, v{A+6}")
    a(f"v_add_f32 v26, v26, v{A+7}")
    bf16r(a, 25, 25)
    bf16r(a, 26, 26)
    a("v_mul_f32 v4, v25, v25")
    a("v_mul_f32 v4, v4, v25")
    a(f"v_mov_b32 v5, {f32hex(0.044715)}")
    a("v_fma_f32 v4, v4, v5, v25")
    a(f"v_mul_f32 v4, {f32hex(2.0*math.sqrt(2.0/math.pi)*LOG2E)}, v4")
    a("v_exp_f32 v4, v4")
    a("s_nop 0")
    a("v_add_f32 v4, 1.0, v4")
    a("v_rcp_f32 v4, v4")
    a("s_nop 0")
    a("v_fma_f32 v4, v4, -2.0, 2.0")
    a("v_mul_f32 v4, 0.5, v4")
    a("v_mul_f32 v4, v4, v25")
    bf16r(a, 4, 4)
    a("v_mul_f32 v4, v4, v26")
    bf16r(a, 4, 4)
    a("v_cmp_gt_u32 vcc, 32, v0")
    a("s_nop 1")
    a("v_cndmask_b32 v4, 0, v4, vcc")
    a("v_and_b32 v5, 15, v0")
    a("v_lshlrev_b32 v5, 3, v5")
    a("v_lshrrev_b32 v24, 4, v0")
    a("v_lshl_add_u32 v5, v24, 2, v5")
    a("v_lshlrev_b32 v24, 2, v0")
    a("v_cndmask_b32 v5, v24, v5, vcc")
    a(f"ds_write_b32 v5, v4 offset:{GL}")
    a.label("kc_skipg")
    a("s_mov_b64 exec, s[44:45]")
    a("s_waitcnt lgkmcnt(0)")
    a("s_barrier")
    a("v_lshlrev_b32 v24, 3, v31")
    for i in range(6):
        a(f"ds_read_b64 v[{120+2*i}:{121+2*i}], v24 offset:{GL+i*24}")
    for r in range(A, A + 16):
        a(f"v_mov_b32 v{r}, 0")
    a("s_waitcnt lgkmcnt(0)")
    a("s_waitcnt vmcnt(0)")
    for i in range(6):
        for r in range(4):
            unpack_fma(a, 72 + 4 * i + r,
                       [(A + 2 * r, A + 2 * r + 1), (A + 8 + 2 * r, A + 9 + 2 * r)],
                       [120 + 2 * i, 121 + 2 * i])
    a("v_mul_u32_u24 v24, 5120, v31")
    a("v_lshl_add_u32 v24, v98, 5, v24")
    a("v_cmp_gt_u32 vcc, 240, v0")
    a("s_and_saveexec_b64 s[44:45], vcc")
    a(f"ds_write_b128 v24, v[{A}:{A+3}] offset:{RED}")
    a(f"ds_write_b128 v24, v[{A+4}:{A+7}] offset:{RED+16}")
    a(f"ds_write_b128 v24, v[{A+8}:{A+11}] offset:{RED+2560}")
    a(f"ds_write_b128 v24, v[{A+12}:{A+15}] offset:{RED+2560+16}")
    a("s_mov_b64 exec, s[44:45]")
    a("s_waitcnt lgkmcnt(0)")
    a("s_barrier")
    a("v_lshlrev_b32 v24, 2, v0")
    for k in range(5):
        for r in range(3):
            a(f"ds_read_b32 v{A+k*3+r}, v24 offset:{RED+r*5120+k*1024}")
    a("s_waitcnt lgkmcnt(0)")
    a("s_mul_i32 s42, s40, 5120")
    a(f"s_add_u32 s42, s42, {P2_OFF}")
    for k in range(5):
        a(f"v_add_f32 v{A+k*3}, v{A+k*3}, v{A+k*3+1}")
        a(f"v_add_f32 v{A+k*3}, v{A+k*3}, v{A+k*3+2}")
        if k == 4:
            a("s_add_u32 s42, s42, 4096")
        a(f"buffer_store_dword v{A+k*3}, v24, s[16:19], s42 offen offset:{(k%4)*1024}")
    a.label("kc_done")
    a("s_endpgm")
    return name, 244


def k_d(a):
    name = "kd_kernel"
    kernel_header(a, name)
    a("s_cmp_ge_u32 s2, 20")
    a("s_cbranch_scc1 kd_done")
    load_srds(a, [("ws", 16), ("out", 28)])
    prologue_ids(a)
    a("s_movk_i32 s20, 5120")
    a("v_mul_lo_u32 v6, v2, s20")
    a("v_mul_u32_u24 v6, 24, v6")
    a("v_add_u32 v6, v6, v3")
    a("s_lshl_b32 s21, s2, 8")
    a(f"s_add_u32 s22, s21, {P2_OFF}")
    for i in range(24):
        a(f"buffer_load_dword v{16+i}, v6, s[16:19], s22 offen")
        if i < 23:
            a("s_add_u32 s22, s22, 5120")
    a(f"s_add_u32 s22, s21, {H_OFF}")
    a("buffer_load_dword v8, v3, s[16:19], s22 offen")
    a("s_waitcnt vmcnt(1)")
    a("v_add_f32 v9, v16, v17")
    for i in range(2, 24):
        a(f"v_add_f32 v9, v9, v{16+i}")
    a("v_lshlrev_b32 v10, 2, v0")
    a("ds_write_b32 v10, v9")
    a("s_waitcnt lgkmcnt(0)")
    a("s_barrier")
    a("v_cmp_gt_u32 vcc, 64, v0")
    a("s_and_saveexec_b64 s[22:23], vcc")
    a("s_cbranch_execz kd_done")
    for w in range(4):
        a(f"ds_read_b32 v{16+w}, v3 offset:{w*256}")
    a("s_waitcnt lgkmcnt(0) vmcnt(0)")
    a("v_add_f32 v9, v16, v17")
    a("v_add_f32 v9, v9, v18")
    a("v_add_f32 v9, v9, v19")
    bf16r(a, 9, 9)
    a("v_add_f32 v9, v9, v8")
    a("v_cvt_pk_bf16_f32 v9, v9, v9")
    a("v_lshlrev_b32 v10, 1, v1")
    a("s_lshl_b32 s21, s2, 7")
    a("buffer_store_short v9, v10, s[28:31], s21 offen")
    a.label("kd_done")
    a("s_endpgm")
    return name, 48


def main(out):
    a = Asm()
    hdr = open("cdna_kernels/" + NAME + ".s.ref").read().split("; Override launch geometry")[0]
    launches = [
        ("kq_kernel", 256, 5120 + 12288),
        ("ka_kernel", 256, 147456 + 4096),
        ("kb_kernel", 160, 256 + 6144 + 16384 + 1024),
        ("kc_kernel", 96, 5120 + 32768 + 1024 + 256),
        ("kd_kernel", 20, 1024),
    ]
    txt = hdr
    for k, g, l in launches:
        blk = 512 if k == "ka_kernel" else 256
        txt += f"; @launch kernel={k} grid=({g},1,1) block=({blk},1,1) lds={l}\n"
    txt += '.amdgcn_target "amdgcn-amd-amdhsa--gfx950"\n.text\n'
    descs = []
    for fn in (k_q, k_a, k_b, k_c, k_d):
        n, v = fn(a)
        descs.append(kernel_desc(n, v))
    txt += a.text()
    txt += '.section .rodata,"a"\n.p2align 6\n'
    for d in descs:
        txt += ".p2align 6\n" + d
    open(out, "w").write(txt)


if __name__ == "__main__":
    main(sys.argv[1] if len(sys.argv) > 1 else "cdna_kernels/" + NAME + ".s")
```

```python
import math
import sys
from common import *

NAME = "sequential_preLN__sliding_block_cached__geglu_ffn__decode"
Q_OFF = 0
ACC1_OFF = 32768
ACC2_OFF = 40960
PART_OFF = 65536
NSPLIT = 8
DEBUG = False
LOG2E = math.log2(math.e)
SCALE = 192 ** -0.5


def f32hex(x):
    import struct
    return "0x%08x" % struct.unpack("<I", struct.pack("<f", x))[0]


def unpack_fma(a, wreg, accs, xs):
    a(f"v_lshlrev_b32 v4, 16, v{wreg}")
    a(f"v_and_b32 v5, 0xffff0000, v{wreg}")
    for (lo, hi), x in zip(accs, xs):
        a(f"v_fmac_f32 v{lo}, v{x}, v4")
        a(f"v_fmac_f32 v{hi}, v{x}, v5")


def prologue_ids(a):
    a("v_and_b32 v1, 63, v0")
    a("v_lshrrev_b32 v2, 6, v0")
    a("v_lshlrev_b32 v3, 2, v1")


QP_OFF = 4 << 20


def k_q(a):
    name = "kq_kernel"
    kernel_header(a, name)
    a("s_cmp_ge_u32 s2, 256")
    a("s_cbranch_scc1 kq_done")
    load_srds(a, [("x", 8), ("wq", 12), ("ws", 16)])
    prologue_ids(a)
    a("s_lshr_b32 s20, s2, 3")
    a("s_and_b32 s21, s2, 7")
    a("v_and_b32 v6, 1, v2")
    a("v_mul_u32_u24 v7, 1280, v6")
    a("v_add_u32 v7, v7, v3")
    for i in range(5):
        a(f"buffer_load_dword v{8+i}, v7, s[8:11], 0 offen offset:{i*256}")
    a("v_lshrrev_b32 v28, 5, v1")
    a("v_and_b32 v29, 31, v1")
    a("v_lshl_add_u32 v30, v2, 1, v28")
    a("v_mul_u32_u24 v31, 12288, v30")
    a("v_mul_u32_u24 v27, 12, v29")
    a("v_add_u32 v31, v31, v27")
    a("s_mul_i32 s22, s20, 384")
    a("s_mul_i32 s23, s21, 983040")
    a("s_add_u32 s22, s22, s23")
    WQ = 32
    for i in range(10):
        a(f"buffer_load_dwordx3 v[{WQ+4*i}:{WQ+4*i+2}], v31, s[12:15], s22 offen nt")
        if i < 9:
            a("s_add_u32 s22, s22, 98304")
    for r in range(92, 96):
        a(f"v_mov_b32 v{r}, -1")
    a("v_lshlrev_b32 v96, 4, v0")
    a("s_mul_i32 s23, s2, 2100")
    a(f"s_add_u32 s23, s23, {P1_OFF}")
    a("v_cmp_gt_u32 vcc, 132, v0")
    a("s_and_saveexec_b64 s[24:25], vcc")
    a("s_cbranch_execz kq_nofill")
    a("buffer_store_dwordx4 v[92:95], v96, s[16:19], s23 offen")
    a.label("kq_nofill")
    a("s_mov_b64 exec, s[24:25]")
    a("s_waitcnt vmcnt(10)")
    vals = list(range(14, 24))
    for i in range(5):
        a(f"v_lshlrev_b32 v{14+2*i}, 16, v{8+i}")
        a(f"v_and_b32 v{15+2*i}, 0xffff0000, v{8+i}")
    emit_ln(a, vals, 3, 24, 25, 26, 27, sbase=40)
    a("v_lshlrev_b32 v24, 4, v1")
    a("v_lshl_add_u32 v24, v6, 2, v24")
    for i in range(5):
        a(f"ds_write_b32 v24, v{14+2*i} offset:{i*1024}")
        a(f"ds_write_b32 v24, v{15+2*i} offset:{i*1024+8}")
    a("s_waitcnt lgkmcnt(0)")
    a("s_barrier")
    a("s_mul_i32 s23, s21, 640")
    a("v_lshlrev_b32 v24, 3, v30")
    a("v_add_u32 v24, s23, v24")
    XN = 72
    for i in range(10):
        a(f"ds_read_b64 v[{XN+2*i}:{XN+2*i+1}], v24 offset:{i*64}")
    A = 92
    for r in range(A, A + 12):
        a(f"v_mov_b32 v{r}, 0")
    a("s_waitcnt lgkmcnt(0)")
    for i in range(10):
        a(f"s_waitcnt vmcnt({9-i})")
        for r in range(3):
            unpack_fma(a, WQ + 4 * i + r, [(A + 2 * r, A + 1 + 2 * r), (A + 6 + 2 * r, A + 7 + 2 * r)],
                       [XN + 2 * i, XN + 2 * i + 1])
    a("v_mul_u32_u24 v24, 1536, v30")
    a("v_mul_u32_u24 v25, 24, v29")
    a("v_add_u32 v24, v24, v25")
    for b in range(2):
        for k in range(3):
            a(f"ds_write_b64 v24, v[{A+6*b+2*k}:{A+6*b+2*k+1}] offset:{5120+b*768+k*8}")
    a("s_waitcnt lgkmcnt(0)")
    a("s_barrier")
    a("v_lshlrev_b32 v24, 2, v0")
    a("s_mul_i32 s22, s2, 1536")
    a(f"s_add_u32 s22, s22, {QP_OFF}")
    for part in range(2):
        if part == 1:
            a("v_cmp_gt_u32 vcc, 128, v0")
            a("s_and_saveexec_b64 s[24:25], vcc")
            a("s_cbranch_execz kq_done")
        for w in range(8):
            a(f"ds_read_b32 v{32+w}, v24 offset:{5120+w*1536+part*1024}")
        a("s_waitcnt lgkmcnt(0)")
        a("v_add_f32 v32, v32, v33")
        for w in range(2, 8):
            a(f"v_add_f32 v32, v32, v{32+w}")
        a(f"buffer_store_dword v32, v24, s[16:19], s22 offen offset:{part*1024}")
    a.label("kq_done")
    a("s_endpgm")
    return name, 104


def k_a(a):
    name = "ka_kernel"
    kernel_header(a, name)
    a("s_cmp_ge_u32 s2, 256")
    a("s_cbranch_scc1 ka_done")
    load_srds(a, [("k", 8), ("v", 12), ("ws", 16)])
    prologue_ids(a)
    a("v_and_b32 v6, 15, v1")
    a("v_lshrrev_b32 v7, 4, v1")
    a("v_readfirstlane_b32 s33, v2")
    a("s_and_b32 s20, s2, 7")
    a("s_lshl_b32 s20, s20, 2")
    a("s_lshr_b32 s21, s2, 3")
    a("s_and_b32 s22, s21, 3")
    a("s_add_u32 s20, s20, s22")
    a("s_lshr_b32 s21, s2, 5")
    AUX = 147456
    a("s_lshr_b32 s22, s33, 2")
    a("s_and_b32 s23, s33, 3")
    a("s_mul_i32 s30, s20, 12288")
    a("s_mul_i32 s31, s22, 768")
    a("s_add_u32 s30, s30, s31")
    a(f"s_add_u32 s30, s30, {QP_OFF}")
    QR = 96
    for sp in range(8):
        for k in range(3):
            a(f"buffer_load_dword v{QR+sp*3+k}, v3, s[16:19], s30 offen offset:{k*256}")
        if sp < 7:
            a("s_add_u32 s30, s30, 1536")
    for i in range(6):
        a(f"v_add_u32 v10, {64*i}, v1")
        a("v_mul_u32_u24 v11, 2731, v10")
        a("v_lshrrev_b32 v11, 16, v11")
        a("v_mul_u32_u24 v12, 24, v11")
        a("v_sub_u32 v13, v10, v12")
        a("v_lshrrev_b32 v11, 1, v11")
        a("v_and_b32 v11, 3, v11")
        a("v_lshlrev_b32 v11, 1, v11")
        a("v_xor_b32 v13, v13, v11")
        a("v_add_u32 v13, v13, v12")
        a(f"v_add_u32 v13, {64-64*i}, v13" if i == 0 else f"v_subrev_u32 v13, {64*i-64}, v13")
        a(f"v_lshlrev_b32 v{16+i}, 4, v13")
    a("s_lshl_b32 s27, s22, 5")
    a("s_add_u32 s27, s27, s20")
    a("s_mul_i32 s24, s27, 3145728")
    a("s_mul_i32 s25, s21, 98304")
    a("s_add_u32 s24, s24, s25")
    a("s_mul_i32 s25, s23, 24576")
    a("s_add_u32 s24, s24, s25")
    a("s_add_u32 s24, s24, 2358272")
    a("s_mul_i32 s34, s33, 18432")

    def dma(tile):
        srd = 8 if tile < 4 else 12
        t = tile % 4
        slot = tile % 3
        a(f"s_add_u32 s26, s34, {slot*6144}")
        a("s_mov_b32 m0, s26")
        a(f"s_add_u32 s25, s24, {t*6144}")
        for i in range(4):
            a(f"buffer_load_dwordx4 v{16+i}, s[{srd}:{srd+3}], s25 offen offset:{i*1024} nt lds")
        a(f"s_add_u32 s26, s34, {slot*6144+4096}")
        a("s_mov_b32 m0, s26")
        a(f"s_add_u32 s25, s24, {t*6144+4096}")
        for i in range(4, 6):
            a(f"buffer_load_dwordx4 v{16+i}, s[{srd}:{srd+3}], s25 offen offset:{(i-4)*1024} nt lds")

    for t in range(3):
        dma(t)
    a("v_mul_u32_u24 v15, 18432, v2")
    a("v_lshrrev_b32 v22, 1, v6")
    a("v_and_b32 v22, 3, v22")
    a("v_lshlrev_b32 v22, 1, v22")
    a("v_mul_u32_u24 v23, 24, v6")
    for m in range(6):
        a(f"v_add_u32 v30, {4*m}, v7")
        a("v_xor_b32 v30, v30, v22")
        a("v_add_u32 v30, v30, v23")
        a(f"v_lshl_add_u32 v{24+m}, v30, 4, v15")
    a("v_lshrrev_b32 v10, 2, v6")
    a("v_and_b32 v11, 3, v6")
    a("v_and_b32 v12, 1, v7")
    a("v_lshrrev_b32 v13, 1, v7")
    a("v_mul_u32_u24 v14, 6144, v13")
    a("v_add_u32 v14, v14, v15")
    a("v_lshl_add_u32 v14, v11, 3, v14")
    for half in range(2):
        a("v_lshlrev_b32 v30, 3, v12")
        a(f"v_add_u32 v30, {half*4}, v30")
        a("v_add_u32 v30, v30, v10")
        a("v_lshrrev_b32 v31, 1, v30")
        a("v_and_b32 v31, 3, v31")
        a("v_mul_u32_u24 v30, 384, v30")
        a("v_add_u32 v30, v30, v14")
        for e in range(4):
            a(f"v_xor_b32 v40, {e}, v31")
            a(f"v_lshl_add_u32 v{32+half*4+e}, v40, 5, v30")
    a(f"s_mov_b32 s28, {f32hex(SCALE)}")
    a(f"s_mov_b32 s29, {f32hex(LOG2E)}")
    a("v_lshlrev_b32 v41, 9, v2")
    a(f"v_add_u32 v41, {AUX}, v41")
    a("v_lshl_add_u32 v42, v1, 1, v41")
    a("v_lshl_add_u32 v43, v7, 4, v41")
    a("s_waitcnt vmcnt(18)")
    for k in range(3):
        for sp in range(1, 8):
            a(f"v_add_f32 v{QR+k}, v{QR+k}, v{QR+sp*3+k}")
        a(f"v_cvt_pk_bf16_f32 v{QR+k}, v{QR+k}, v{QR+k}")
        a(f"ds_write_b16 v42, v{QR+k} offset:{k*128}")
    a("s_waitcnt lgkmcnt(0)")
    Q = 64
    for j in range(6):
        a(f"ds_read_b128 v[{Q+4*j}:{Q+4*j+3}], v43 offset:{j*64}")
    TB = 96
    D = 44
    for t in range(4):
        a("s_waitcnt vmcnt(12)")
        slot = t % 3
        for m in range(6):
            a(f"ds_read_b128 v[{TB+4*m}:{TB+4*m+3}], v{24+m} offset:{slot*6144}")
        a("s_waitcnt lgkmcnt(0)")
        dma(t + 3)
        for j in range(6):
            c = "0" if j == 0 else f"v[{D+4*t}:{D+4*t+3}]"
            a(f"v_mfma_f32_16x16x32_bf16 v[{D+4*t}:{D+4*t+3}], v[{Q+4*j}:{Q+4*j+3}], v[{TB+4*j}:{TB+4*j+3}], {c}")
        a("s_nop 3")
    a("s_nop 7")
    for tt in range(4):
        s_ = D + 4 * tt
        bf16r(a, s_, s_)
        a(f"v_mul_f32 v{s_}, s28, v{s_}")
        bf16r(a, s_, s_)
    a(f"v_max_f32 v11, v{D}, v{D+4}")
    a(f"v_max3_f32 v11, v11, v{D+8}, v{D+12}")
    for r in (1, 2, 4, 8):
        a("s_nop 1")
        a(f"v_max_f32_dpp v11, v11, v11 row_ror:{r} row_mask:0xf bank_mask:0xf")
    for tt in range(4):
        s_ = D + 4 * tt
        a(f"v_sub_f32 v{s_}, v{s_}, v11")
        a(f"v_mul_f32 v{s_}, s29, v{s_}")
        a(f"v_exp_f32 v{s_}, v{s_}")
    a("s_nop 0")
    a(f"v_add_f32 v12, v{D}, v{D+4}")
    a(f"v_add_f32 v12, v12, v{D+8}")
    a(f"v_add_f32 v12, v12, v{D+12}")
    a(f"v_mov_b32 v30, v{D}")
    for gg in range(1, 4):
        a(f"v_cmp_eq_u32 vcc, {gg}, v7")
        a("s_nop 1")
        a(f"v_cndmask_b32 v30, v30, v{D+4*gg}, vcc")
    a("v_cvt_pk_bf16_f32 v30, v30, v30")
    a("ds_write_b16 v42, v30 offset:384")
    for r in (1, 2, 4, 8):
        a("s_nop 1")
        a(f"v_add_f32_dpp v12, v12, v12 row_ror:{r} row_mask:0xf bank_mask:0xf")
    a("s_waitcnt lgkmcnt(0)")
    PA = 60
    a(f"ds_read_b128 v[{PA}:{PA+3}], v43 offset:384")
    a(f"ds_read_b128 v[64:67], v43 offset:{384+64}")
    O = 120
    for u in range(2):
        a(f"s_waitcnt vmcnt({6 if u == 0 else 0})")
        pa = PA if u == 0 else 64
        for q4 in range(3):
            for e in range(4):
                off = q4 * 128 + (6144 if u == 0 else 0)
                a(f"ds_read_b64_tr_b16 v[{TB+4*e}:{TB+4*e+1}], v{32+e} offset:{off}")
                a(f"ds_read_b64_tr_b16 v[{TB+4*e+2}:{TB+4*e+3}], v{36+e} offset:{off}")
            a("s_waitcnt lgkmcnt(0)")
            for e in range(4):
                dt = q4 * 4 + e
                c = "0" if u == 0 else f"v[{O+4*dt}:{O+4*dt+3}]"
                a(f"v_mfma_f32_16x16x32_bf16 v[{O+4*dt}:{O+4*dt+3}], v[{pa}:{pa+3}], v[{TB+4*e}:{TB+4*e+3}], {c}")
            a("s_nop 3")
        if u == 0:
            dma(7)
    a("s_nop 7")
    a("v_mul_u32_u24 v13, 18432, v2")
    a("v_lshl_add_u32 v14, v1, 2, v13")
    a("v_mov_b32 v18, v11")
    a("v_mov_b32 v19, v12")
    a("v_cmp_gt_u32 vcc, 16, v1")
    a("s_and_saveexec_b64 s[30:31], vcc")
    for dt in range(12):
        a(f"ds_write_b32 v14, v{O+4*dt} offset:{dt*64}")
    a("ds_write_b64 v13, v[18:19] offset:768")
    a("s_mov_b64 exec, s[30:31]")
    a("s_waitcnt lgkmcnt(0)")
    a("s_barrier")
    a("v_and_b32 v16, 255, v0")
    a("v_lshrrev_b32 v15, 8, v0")
    a("v_mul_u32_u24 v18, 73728, v15")
    a("v_lshl_add_u32 v17, v16, 2, v18")
    for w in range(4):
        a(f"ds_read_b64 v[{20+2*w}:{21+2*w}], v18 offset:{w*18432+768}")
        a(f"ds_read_b32 v{30+w}, v17 offset:{w*18432}")
    a("s_waitcnt lgkmcnt(0)")
    a("v_max_f32 v34, v20, v22")
    a("v_max3_f32 v34, v34, v24, v26")
    for w in range(4):
        a(f"v_sub_f32 v{20+2*w}, v{20+2*w}, v34")
        a(f"v_mul_f32 v{20+2*w}, s29, v{20+2*w}")
        a(f"v_exp_f32 v{20+2*w}, v{20+2*w}")
    a("s_nop 0")
    a("v_mul_f32 v35, v20, v21")
    a("v_mul_f32 v36, v20, v30")
    for w in range(1, 4):
        a(f"v_fmac_f32 v35, v{20+2*w}, v{21+2*w}")
        a(f"v_fmac_f32 v36, v{20+2*w}, v{30+w}")
    a("v_cmp_eq_u32 vcc, 192, v16")
    a("s_nop 1")
    a("v_cndmask_b32 v36, v36, v34, vcc")
    a("v_cmp_eq_u32 vcc, 193, v16")
    a("s_nop 1")
    a("v_cndmask_b32 v36, v36, v35, vcc")
    a("v_cmp_gt_u32 vcc, 194, v16")
    a("s_and_saveexec_b64 s[30:31], vcc")
    a("s_cbranch_execz ka_done")
    a("s_lshl_b32 s22, s20, 3")
    a("s_add_u32 s22, s22, s21")
    a("s_lshl_b32 s22, s22, 10")
    a(f"s_add_u32 s22, s22, {PART_OFF}")
    a("v_lshlrev_b32 v17, 18, v15")
    a("v_lshl_add_u32 v17, v16, 2, v17")
    a("buffer_store_dword v36, v17, s[16:19], s22 offen")
    a.label("ka_done")
    a("s_endpgm")
    return name, 168


P1_OFF = 1 << 20
H_OFF = P1_OFF + 40960
P2_OFF = H_OFF + 5120


def emit_poll(a, lab, first, n, target, vtmp, voff, dbg_srd):
    a(f"v_and_b32 v{voff}, {n-1}, v1")
    a(f"v_lshlrev_b32 v{voff}, 2, v{voff}")
    a("s_mov_b32 s58, 0")
    a.label(lab)
    a(f"buffer_load_dword v{vtmp}, v{voff}, s[{dbg_srd}:{dbg_srd+3}], 0 offen offset:{first*4} sc1")
    a("s_waitcnt vmcnt(0)")
    a(f"v_cmp_ne_u32 vcc, {target}, v{vtmp}")
    a("s_add_u32 s58, s58, 1")
    a("s_nop 1")
    a(f"s_cbranch_vccz {lab}_ok")
    a("s_sleep 2")
    a("s_cmp_lt_u32 s58, 0x200000")
    a(f"s_cbranch_scc1 {lab}")
    a.label(lab + "_ok")


def emit_signal(a, idx_sgpr_or_imm, dbg_srd, v0_, v1_):
    a(f"s_lshl_b32 s59, {idx_sgpr_or_imm}, 2")
    a(f"v_mov_b32 v{v0_}, s59")
    a(f"v_mov_b32 v{v1_}, 1")
    a("v_cmp_eq_u32 vcc, 0, v1")
    a("s_and_saveexec_b64 s[56:57], vcc")
    a(f"buffer_atomic_add v{v1_}, v{v0_}, s[{dbg_srd}:{dbg_srd+3}], 0 offen")
    a("s_mov_b64 exec, s[56:57]")

def role_c(a):
    a.label("kt_role_c")
    a("s_sub_u32 s2, s2, 160")
    load_srds(a, [("x", 8), ("wg", 12), ("ws", 16), ("wu", 20), ("wd", 24), ("dbg", 60)])
    prologue_ids(a)
    a("s_and_b32 s40, s2, 7")
    a("s_mul_i32 s40, s40, 12")
    a("s_lshr_b32 s41, s2, 3")
    a("s_add_u32 s40, s40, s41")
    a("v_and_b32 v6, 1, v2")
    a("v_mul_u32_u24 v7, 1280, v6")
    a("v_add_u32 v7, v7, v3")
    a("v_lshlrev_b32 v27, 1, v7")
    a("v_and_b32 v28, 1, v0")
    a("v_lshrrev_b32 v29, 1, v0")
    a("v_mul_u32_u24 v30, 3072, v29")
    a("v_lshl_add_u32 v30, v28, 4, v30")
    a("s_lshl_b32 s43, s40, 5")
    for i in range(5):
        a(f"buffer_load_dwordx4 v[{32+4*i}:{35+4*i}], v30, s[12:15], s43 offen nt")
        a(f"buffer_load_dwordx4 v[{52+4*i}:{55+4*i}], v30, s[20:23], s43 offen nt")
        if i < 4:
            a("s_add_u32 s43, s43, 393216")
    a("v_mul_u32_u24 v31, 205, v0")
    a("v_lshrrev_b32 v31, 14, v31")
    a("v_mul_u32_u24 v98, 80, v31")
    a("v_sub_u32 v98, v0, v98")
    a("v_mul_u32_u24 v99, 1280, v31")
    a("v_lshl_add_u32 v99, v98, 4, v99")
    a("s_mul_i32 s43, s40, 20480")
    for i in range(6):
        a(f"buffer_load_dwordx4 v[{72+4*i}:{75+4*i}], v99, s[24:27], s43 offen nt")
        if i < 5:
            a("s_add_u32 s43, s43, 3840")
    a("v_readfirstlane_b32 s48, v2")
    a("s_cmp_ge_u32 s48, 2")
    a("s_cbranch_scc1 kc_noln")
    a("s_mov_b32 s58, 0")
    for i in range(5):
        a(f"buffer_load_dword v{8+i}, v7, s[8:11], 0 offen offset:{i*256}")
    PP = 164
    a.label("kc_poll")
    a(f"s_mov_b32 s42, {P1_OFF}")
    for g in range(8):
        for i in range(5):
            a(f"buffer_load_dwordx2 v[{PP+g*10+2*i}:{PP+g*10+2*i+1}], v27, s[16:19], s42 offen offset:{i*512} sc1")
        if g < 7:
            a("s_add_u32 s42, s42, 5120")
    a("s_waitcnt vmcnt(0)")
    a(f"v_max_u32 v100, v{PP}, v{PP+1}")
    for r in range(PP + 2, PP + 80, 2):
        a(f"v_max3_u32 v100, v100, v{r}, v{r+1}")
    a("v_cmp_eq_u32 vcc, -1, v100")
    a("s_add_u32 s58, s58, 1")
    a("s_nop 1")
    a("s_cbranch_vccz kc_poll_ok")
    a("s_sleep 1")
    a("s_cmp_lt_u32 s58, 0x100000")
    a("s_cbranch_scc1 kc_poll")
    a.label("kc_poll_ok")
    vals = list(range(14, 24))
    for i in range(5):
        a(f"v_lshlrev_b32 v{14+2*i}, 16, v{8+i}")
        a(f"v_and_b32 v{15+2*i}, 0xffff0000, v{8+i}")
    for e in range(10):
        for g in range(1, 8):
            a(f"v_add_f32 v{PP+e}, v{PP+e}, v{PP+g*10+e}")
        bf16r(a, PP + e, PP + e)
        a(f"v_add_f32 v{14+e}, v{14+e}, v{PP+e}")
        bf16r(a, 14 + e, 14 + e)
    a("s_cmp_lg_u32 s2, 0")
    a("s_cbranch_scc1 kc_noh")
    a(f"s_mov_b32 s42, {H_OFF}")
    for i in range(5):
        a(f"buffer_store_dwordx2 v[{14+2*i}:{15+2*i}], v27, s[16:19], s42 offen offset:{i*512} sc1")
    a("s_waitcnt vmcnt(0)")
    a.label("kc_noh")
    emit_ln(a, vals, 3, 24, 25, 26, 5, sbase=52)
    a("v_lshlrev_b32 v24, 4, v1")
    a("v_lshl_add_u32 v24, v6, 2, v24")
    for i in range(5):
        a(f"ds_write_b32 v24, v{14+2*i} offset:{i*1024}")
        a(f"ds_write_b32 v24, v{15+2*i} offset:{i*1024+8}")
    a.label("kc_noln")
    a("s_waitcnt lgkmcnt(0)")
    a("s_barrier")
    a("v_lshlrev_b32 v24, 3, v29")
    for i in range(5):
        a(f"ds_read_b64 v[{120+2*i}:{121+2*i}], v24 offset:{i*1024}")
    A = 132
    for r in range(A, A + 32):
        a(f"v_mov_b32 v{r}, 0")
    a("s_waitcnt lgkmcnt(0)")
    for i in range(5):
        for m in range(2):
            a(f"s_waitcnt vmcnt({6 + (4-i)*2 + (1-m)})")
            for r in range(4):
                base = A + m * 16
                unpack_fma(a, (32 if m == 0 else 52) + 4 * i + r,
                           [(base + 2 * r, base + 2 * r + 1), (base + 8 + 2 * r, base + 9 + 2 * r)],
                           [120 + 2 * i, 121 + 2 * i])
    RED = 5120
    a("v_lshlrev_b32 v24, 8, v29")
    a("v_lshl_add_u32 v24, v28, 5, v24")
    for mb in range(4):
        a(f"ds_write_b128 v24, v[{A+8*mb}:{A+8*mb+3}] offset:{RED+mb*64}")
        a(f"ds_write_b128 v24, v[{A+8*mb+4}:{A+8*mb+7}] offset:{RED+mb*64+16}")
    a("s_waitcnt lgkmcnt(0)")
    a("s_barrier")
    a("v_lshlrev_b32 v24, 13, v2")
    a("v_add_u32 v24, v24, v3")
    for r in range(32):
        a(f"ds_read_b32 v{A+r}, v24 offset:{RED+r*256}")
    a("s_waitcnt lgkmcnt(0)")
    a(f"v_add_f32 v25, v{A}, v{A+1}")
    for r in range(2, 32):
        a(f"v_add_f32 v25, v25, v{A+r}")
    RED2 = RED + 32768
    a("v_lshlrev_b32 v24, 2, v0")
    a(f"ds_write_b32 v24, v25 offset:{RED2}")
    a("s_waitcnt lgkmcnt(0)")
    a("s_barrier")
    GL = RED2 + 1024
    a("v_cmp_gt_u32 vcc, 36, v0")
    a("s_and_saveexec_b64 s[44:45], vcc")
    a("s_cbranch_execz kc_skipg")
    a("v_lshlrev_b32 v24, 2, v0")
    for w in range(4):
        a(f"ds_read_b32 v{A+w}, v24 offset:{RED2+w*256}")
        a(f"ds_read_b32 v{A+4+w}, v24 offset:{RED2+w*256+128}")
    a("s_waitcnt lgkmcnt(0)")
    a(f"v_add_f32 v25, v{A}, v{A+1}")
    a(f"v_add_f32 v25, v25, v{A+2}")
    a(f"v_add_f32 v25, v25, v{A+3}")
    a(f"v_add_f32 v26, v{A+4}, v{A+5}")
    a(f"v_add_f32 v26, v26, v{A+6}")
    a(f"v_add_f32 v26, v26, v{A+7}")
    bf16r(a, 25, 25)
    bf16r(a, 26, 26)
    a("v_mul_f32 v4, v25, v25")
    a("v_mul_f32 v4, v4, v25")
    a(f"v_mov_b32 v5, {f32hex(0.044715)}")
    a("v_fma_f32 v4, v4, v5, v25")
    a(f"v_mul_f32 v4, {f32hex(2.0*math.sqrt(2.0/math.pi)*LOG2E)}, v4")
    a("v_exp_f32 v4, v4")
    a("s_nop 0")
    a("v_add_f32 v4, 1.0, v4")
    a("v_rcp_f32 v4, v4")
    a("s_nop 0")
    a("v_fma_f32 v4, v4, -2.0, 2.0")
    a("v_mul_f32 v4, 0.5, v4")
    a("v_mul_f32 v4, v4, v25")
    bf16r(a, 4, 4)
    a("v_mul_f32 v4, v4, v26")
    bf16r(a, 4, 4)
    a("v_cmp_gt_u32 vcc, 32, v0")
    a("s_nop 1")
    a("v_cndmask_b32 v4, 0, v4, vcc")
    a("v_and_b32 v5, 15, v0")
    a("v_lshlrev_b32 v5, 3, v5")
    a("v_lshrrev_b32 v24, 4, v0")
    a("v_lshl_add_u32 v5, v24, 2, v5")
    a("v_lshlrev_b32 v24, 2, v0")
    a("v_cndmask_b32 v5, v24, v5, vcc")
    a(f"ds_write_b32 v5, v4 offset:{GL}")
    a.label("kc_skipg")
    a("s_mov_b64 exec, s[44:45]")
    a("s_waitcnt lgkmcnt(0)")
    a("s_barrier")
    a("v_lshlrev_b32 v24, 3, v31")
    for i in range(6):
        a(f"ds_read_b64 v[{120+2*i}:{121+2*i}], v24 offset:{GL+i*24}")
    for r in range(A, A + 16):
        a(f"v_mov_b32 v{r}, 0")
    a("s_waitcnt lgkmcnt(0)")
    a("s_waitcnt vmcnt(0)")
    for i in range(6):
        for r in range(4):
            unpack_fma(a, 72 + 4 * i + r,
                       [(A + 2 * r, A + 2 * r + 1), (A + 8 + 2 * r, A + 9 + 2 * r)],
                       [120 + 2 * i, 121 + 2 * i])
    a("v_mul_u32_u24 v24, 5120, v31")
    a("v_lshl_add_u32 v24, v98, 5, v24")
    a("v_cmp_gt_u32 vcc, 240, v0")
    a("s_and_saveexec_b64 s[44:45], vcc")
    a(f"ds_write_b128 v24, v[{A}:{A+3}] offset:{RED}")
    a(f"ds_write_b128 v24, v[{A+4}:{A+7}] offset:{RED+16}")
    a(f"ds_write_b128 v24, v[{A+8}:{A+11}] offset:{RED+2560}")
    a(f"ds_write_b128 v24, v[{A+12}:{A+15}] offset:{RED+2560+16}")
    a("s_mov_b64 exec, s[44:45]")
    a("s_waitcnt lgkmcnt(0)")
    a("s_barrier")
    a("v_lshlrev_b32 v24, 2, v0")
    for k in range(5):
        for r in range(3):
            a(f"ds_read_b32 v{A+k*3+r}, v24 offset:{RED+r*5120+k*1024}")
    a("s_waitcnt lgkmcnt(0)")
    a("s_mul_i32 s42, s40, 5120")
    a(f"s_add_u32 s42, s42, {P2_OFF}")
    for k in range(5):
        a(f"v_add_f32 v{A+k*3}, v{A+k*3}, v{A+k*3+1}")
        a(f"v_add_f32 v{A+k*3}, v{A+k*3}, v{A+k*3+2}")
        if k == 4:
            a("s_add_u32 s42, s42, 4096")
        a(f"buffer_store_dword v{A+k*3}, v24, s[16:19], s42 offen offset:{(k%4)*1024} sc1")
    a("s_endpgm")


def role_d(a):
    a.label("kt_role_d")
    a("s_sub_u32 s2, s2, 256")
    load_srds(a, [("ws", 16), ("out", 28), ("dbg", 60)])
    prologue_ids(a)
    a("s_mov_b32 s58, 0")
    a("s_movk_i32 s20, 5120")
    a("v_mul_lo_u32 v6, v2, s20")
    a("v_mul_u32_u24 v6, 24, v6")
    a("v_add_u32 v6, v6, v3")
    a("s_lshl_b32 s21, s2, 8")
    a.label("kd_poll")
    a(f"s_add_u32 s22, s21, {P2_OFF}")
    for i in range(24):
        a(f"buffer_load_dword v{16+i}, v6, s[16:19], s22 offen sc1")
        if i < 23:
            a("s_add_u32 s22, s22, 5120")
    a(f"s_add_u32 s22, s21, {H_OFF}")
    a("buffer_load_dword v8, v3, s[16:19], s22 offen sc1")
    a("s_waitcnt vmcnt(0)")
    a("v_max_u32 v40, v8, v16")
    a("v_max_u32 v40, v40, v17")
    for r in range(18, 40, 2):
        a(f"v_max3_u32 v40, v40, v{r}, v{r+1}")
    a("v_cmp_eq_u32 vcc, -1, v40")
    a("s_add_u32 s58, s58, 1")
    a("s_nop 1")
    a("s_cbranch_vccz kd_poll_ok")
    a("s_sleep 1")
    a("s_cmp_lt_u32 s58, 0x100000")
    a("s_cbranch_scc1 kd_poll")
    a.label("kd_poll_ok")
    a("v_add_f32 v9, v16, v17")
    for i in range(2, 24):
        a(f"v_add_f32 v9, v9, v{16+i}")
    a("v_lshlrev_b32 v10, 2, v0")
    a("ds_write_b32 v10, v9")
    a("s_waitcnt lgkmcnt(0)")
    a("s_barrier")
    a("v_cmp_gt_u32 vcc, 64, v0")
    a("s_and_saveexec_b64 s[22:23], vcc")
    a("s_cbranch_execz kt_done")
    for w in range(4):
        a(f"ds_read_b32 v{16+w}, v3 offset:{w*256}")
    a("s_waitcnt lgkmcnt(0) vmcnt(0)")
    a("v_add_f32 v9, v16, v17")
    a("v_add_f32 v9, v9, v18")
    a("v_add_f32 v9, v9, v19")
    bf16r(a, 9, 9)
    a("v_add_f32 v9, v9, v8")
    a("v_cvt_pk_bf16_f32 v9, v9, v9")
    a("v_lshlrev_b32 v10, 1, v1")
    a("s_lshl_b32 s21, s2, 7")
    a("buffer_store_short v9, v10, s[28:31], s21 offen")
    a("s_endpgm")


def k_t(a):
    name = "kt_kernel"
    kernel_header(a, name)
    a("s_cmp_ge_u32 s2, 276")
    a("s_cbranch_scc1 kt_done")
    a("s_cmp_ge_u32 s2, 256")
    a("s_cbranch_scc1 kt_role_d")
    a("s_cmp_ge_u32 s2, 160")
    a("s_cbranch_scc1 kt_role_c")
    load_srds(a, [("wo", 12), ("ws", 16), ("dbg", 60)])
    prologue_ids(a)
    a("s_and_b32 s20, s2, 7")
    a("s_lshr_b32 s21, s2, 3")
    a("v_lshrrev_b32 v6, 5, v1")
    a("v_and_b32 v7, 31, v1")
    a("v_lshlrev_b32 v6, 18, v6")
    a("v_lshl_add_u32 v6, v7, 10, v6")
    a("s_lshl_b32 s22, s20, 15")
    a(f"s_add_u32 s22, s22, {PART_OFF}")
    a("buffer_load_dwordx2 v[8:9], v6, s[16:19], s22 offen offset:768")
    O = 64
    for k in range(3):
        a(f"v_add_u32 v10, {256*k}, v0")
        a("v_mul_u32_u24 v11, 21846, v10")
        a("v_lshrrev_b32 v11, 22, v11")
        a("v_mul_u32_u24 v12, 192, v11")
        a("v_sub_u32 v12, v10, v12")
        a(f"v_lshlrev_b32 v{13+k}, 13, v11")
        a(f"v_lshl_add_u32 v{13+k}, v12, 2, v{13+k}")
        a(f"v_lshlrev_b32 v{16+k}, 5, v11")
    a("s_add_u32 s23, s22, 4096")
    a("s_add_u32 s24, s22, 262144")
    a("s_add_u32 s25, s24, 4096")
    for k in range(3):
        for b in range(2):
            for sp in range(8):
                sreg = 22 + b * 2 + (sp >= 4)
                a(f"buffer_load_dword v{O+(k*2+b)*8+sp}, v{13+k}, s[16:19], s{sreg} offen offset:{(sp%4)*1024}")
    a("v_and_b32 v28, 3, v0")
    a("v_lshrrev_b32 v29, 2, v0")
    a("v_mul_u32_u24 v30, 1280, v29")
    a("v_lshl_add_u32 v30, v28, 4, v30")
    a("s_mul_i32 s26, s20, 983040")
    a("s_lshl_b32 s27, s21, 6")
    a("s_add_u32 s26, s26, s27")
    W = 112
    for i in range(12):
        a(f"buffer_load_dwordx4 v[{W+4*i}:{W+4*i+3}], v30, s[12:15], s26 offen nt")
        if i < 11:
            a("s_add_u32 s26, s26, 81920")
    a(f"s_mov_b32 s29, {f32hex(LOG2E)}")
    a("s_waitcnt vmcnt(60)")
    a("v_mov_b32 v10, v8")
    for r in (1, 2, 4):
        a("s_nop 1")
        a(f"v_max_f32_dpp v10, v10, v10 row_shr:{r} row_mask:0xf bank_mask:0xf" if False else
          f"ds_swizzle_b32 v11, v10 offset:{(r<<10)|0x1f}")
        a("s_waitcnt lgkmcnt(0)")
        a("v_max_f32 v10, v10, v11")
    a("v_sub_f32 v8, v8, v10")
    a("v_mul_f32 v8, s29, v8")
    a("v_exp_f32 v8, v8")
    a("s_nop 0")
    a("v_mul_f32 v9, v8, v9")
    for r in (1, 2, 4):
        a(f"ds_swizzle_b32 v11, v9 offset:{(r<<10)|0x1f}")
        a("s_waitcnt lgkmcnt(0)")
        a("v_add_f32 v9, v9, v11")
    a("v_rcp_f32 v9, v9")
    a("s_nop 0")
    a("v_mul_f32 v8, v8, v9")
    a("ds_write_b32 v3, v8")
    a("s_waitcnt lgkmcnt(0)")
    a("s_barrier")
    a("s_waitcnt vmcnt(12)")
    OL = 256
    for k in range(3):
        for b in range(2):
            a(f"ds_read_b128 v[20:23], v{16+k} offset:{b*128}")
            a(f"ds_read_b128 v[24:27], v{16+k} offset:{b*128+16}")
            a("s_waitcnt lgkmcnt(0)")
            base = O + (k * 2 + b) * 8
            a(f"v_mul_f32 v{8+b}, v20, v{base}")
            for sp in range(1, 8):
                a(f"v_fmac_f32 v{8+b}, v{20+sp}, v{base+sp}")
            bf16r(a, 8 + b, 8 + b)
        a("v_lshlrev_b32 v10, 3, v0")
        a(f"ds_write_b64 v10, v[8:9] offset:{OL+k*2048}")
    a("s_waitcnt lgkmcnt(0)")
    a("s_barrier")
    a("v_lshlrev_b32 v24, 3, v29")
    X = 64
    for i in range(12):
        a(f"ds_read_b64 v[{X+2*i}:{X+2*i+1}], v24 offset:{OL+i*512}")
    A = 96
    for r in range(A, A + 16):
        a(f"v_mov_b32 v{r}, 0")
    a("s_waitcnt lgkmcnt(0)")
    for i in range(12):
        a(f"s_waitcnt vmcnt({11-i})")
        for r in range(4):
            unpack_fma(a, W + 4 * i + r, [(A + 2 * r, A + 1 + 2 * r), (A + 8 + 2 * r, A + 9 + 2 * r)],
                       [X + 2 * i, X + 2 * i + 1])
    RED = 256 + 6144
    a("v_lshlrev_b32 v24, 8, v29")
    a("v_lshl_add_u32 v24, v28, 5, v24")
    a(f"ds_write_b128 v24, v[{A}:{A+3}] offset:{RED}")
    a(f"ds_write_b128 v24, v[{A+4}:{A+7}] offset:{RED+16}")
    a(f"ds_write_b128 v24, v[{A+8}:{A+11}] offset:{RED+128}")
    a(f"ds_write_b128 v24, v[{A+12}:{A+15}] offset:{RED+128+16}")
    a("s_waitcnt lgkmcnt(0)")
    a("s_barrier")
    a("v_lshlrev_b32 v24, 12, v2")
    a("v_add_u32 v24, v24, v3")
    for r in range(16):
        a(f"ds_read_b32 v{X+r}, v24 offset:{RED+r*256}")
    a("s_waitcnt lgkmcnt(0)")
    a(f"v_add_f32 v25, v{X}, v{X+1}")
    for r in range(2, 16):
        a(f"v_add_f32 v25, v25, v{X+r}")
    RED2 = RED + 16384
    a("v_lshlrev_b32 v24, 2, v0")
    a(f"ds_write_b32 v24, v25 offset:{RED2}")
    a("s_waitcnt lgkmcnt(0)")
    a("s_barrier")
    a("v_cmp_gt_u32 vcc, 64, v0")
    a("s_and_saveexec_b64 s[22:23], vcc")
    a("s_cbranch_execz kt_done")
    for w in range(4):
        a(f"ds_read_b32 v{X+w}, v3 offset:{RED2+w*256}")
    a("s_waitcnt lgkmcnt(0)")
    a(f"v_add_f32 v25, v{X}, v{X+1}")
    a(f"v_add_f32 v25, v25, v{X+2}")
    a(f"v_add_f32 v25, v25, v{X+3}")
    a("v_lshrrev_b32 v26, 5, v1")
    a("v_mul_u32_u24 v26, 2560, v26")
    a("v_and_b32 v27, 31, v1")
    a("v_lshl_add_u32 v26, v27, 2, v26")
    a("s_mul_i32 s27, s20, 5120")
    a("s_lshl_b32 s28, s21, 7")
    a("s_add_u32 s27, s27, s28")
    a(f"s_add_u32 s27, s27, {P1_OFF}")
    a("buffer_store_dword v25, v26, s[16:19], s27 offen sc1")
    a("s_endpgm")
    role_c(a)
    role_d(a)
    a.label("kt_done")
    a("s_endpgm")
    return name, 244


def main(out):
    a = Asm()
    hdr = open("cdna_kernels/" + NAME + ".s.ref").read().split("; Override launch geometry")[0]
    launches = [
        ("kq_kernel", 256, 5120 + 12288),
        ("ka_kernel", 256, 147456 + 4096),
        ("kt_kernel", 276, 5120 + 32768 + 1024 + 256),
    ]
    txt = hdr
    for k, g, l in launches:
        blk = 512 if k == "ka_kernel" else 256
        txt += f"; @launch kernel={k} grid=({g},1,1) block=({blk},1,1) lds={l}\n"
    txt += '.amdgcn_target "amdgcn-amd-amdhsa--gfx950"\n.text\n'
    descs = []
    for fn in (k_q, k_a, k_t):
        n, v = fn(a)
        descs.append(kernel_desc(n, v))
    txt += a.text()
    txt += '.section .rodata,"a"\n.p2align 6\n'
    for d in descs:
        txt += ".p2align 6\n" + d
    open(out, "w").write(txt)


if __name__ == "__main__":
    main(sys.argv[1] if len(sys.argv) > 1 else "cdna_kernels/" + NAME + ".s")
```

```python
import math
import sys
from common import *

NAME = "sequential_preLN__sliding_block_cached__geglu_ffn__decode"
Q_OFF = 0
ACC1_OFF = 32768
ACC2_OFF = 40960
PART_OFF = 65536
NSPLIT = 8
DEBUG = False
LOG2E = math.log2(math.e)
SCALE = 192 ** -0.5


def f32hex(x):
    import struct
    return "0x%08x" % struct.unpack("<I", struct.pack("<f", x))[0]


def unpack_fma(a, wreg, accs, xs):
    a(f"v_lshlrev_b32 v4, 16, v{wreg}")
    a(f"v_and_b32 v5, 0xffff0000, v{wreg}")
    for (lo, hi), x in zip(accs, xs):
        a(f"v_fmac_f32 v{lo}, v{x}, v4")
        a(f"v_fmac_f32 v{hi}, v{x}, v5")


def prologue_ids(a):
    a("v_and_b32 v1, 63, v0")
    a("v_lshrrev_b32 v2, 6, v0")
    a("v_lshlrev_b32 v3, 2, v1")


QP_OFF = 4 << 20


def k_q(a):
    name = "kq_kernel"
    kernel_header(a, name)
    a("s_cmp_ge_u32 s2, 256")
    a("s_cbranch_scc1 kq_done")
    load_srds(a, [("x", 8), ("wq", 12), ("ws", 16)])
    prologue_ids(a)
    a("s_lshr_b32 s20, s2, 3")
    a("s_and_b32 s21, s2, 7")
    a("v_and_b32 v6, 1, v2")
    a("v_mul_u32_u24 v7, 1280, v6")
    a("v_add_u32 v7, v7, v3")
    for i in range(5):
        a(f"buffer_load_dword v{8+i}, v7, s[8:11], 0 offen offset:{i*256}")
    a("v_lshrrev_b32 v28, 5, v1")
    a("v_and_b32 v29, 31, v1")
    a("v_lshl_add_u32 v30, v2, 1, v28")
    a("v_mul_u32_u24 v31, 12288, v30")
    a("v_mul_u32_u24 v27, 12, v29")
    a("v_add_u32 v31, v31, v27")
    a("s_mul_i32 s22, s20, 384")
    a("s_mul_i32 s23, s21, 983040")
    a("s_add_u32 s22, s22, s23")
    WQ = 32
    for i in range(10):
        a(f"buffer_load_dwordx3 v[{WQ+4*i}:{WQ+4*i+2}], v31, s[12:15], s22 offen nt")
        if i < 9:
            a("s_add_u32 s22, s22, 98304")
    for r in range(92, 96):
        a(f"v_mov_b32 v{r}, -1")
    a("v_lshlrev_b32 v96, 4, v0")
    a("s_mul_i32 s23, s2, 2100")
    a(f"s_add_u32 s23, s23, {P1_OFF}")
    a("v_cmp_gt_u32 vcc, 132, v0")
    a("s_and_saveexec_b64 s[24:25], vcc")
    a("s_cbranch_execz kq_nofill")
    a("buffer_store_dwordx4 v[92:95], v96, s[16:19], s23 offen")
    a.label("kq_nofill")
    a("s_mov_b64 exec, s[24:25]")
    a("s_waitcnt vmcnt(10)")
    vals = list(range(14, 24))
    for i in range(5):
        a(f"v_lshlrev_b32 v{14+2*i}, 16, v{8+i}")
        a(f"v_and_b32 v{15+2*i}, 0xffff0000, v{8+i}")
    emit_ln(a, vals, 3, 24, 25, 26, 27, sbase=40)
    a("v_lshlrev_b32 v24, 4, v1")
    a("v_lshl_add_u32 v24, v6, 2, v24")
    for i in range(5):
        a(f"ds_write_b32 v24, v{14+2*i} offset:{i*1024}")
        a(f"ds_write_b32 v24, v{15+2*i} offset:{i*1024+8}")
    a("s_waitcnt lgkmcnt(0)")
    a("s_barrier")
    a("s_mul_i32 s23, s21, 640")
    a("v_lshlrev_b32 v24, 3, v30")
    a("v_add_u32 v24, s23, v24")
    XN = 72
    for i in range(10):
        a(f"ds_read_b64 v[{XN+2*i}:{XN+2*i+1}], v24 offset:{i*64}")
    A = 92
    for r in range(A, A + 12):
        a(f"v_mov_b32 v{r}, 0")
    a("s_waitcnt lgkmcnt(0)")
    for i in range(10):
        a(f"s_waitcnt vmcnt({9-i})")
        for r in range(3):
            unpack_fma(a, WQ + 4 * i + r, [(A + 2 * r, A + 1 + 2 * r), (A + 6 + 2 * r, A + 7 + 2 * r)],
                       [XN + 2 * i, XN + 2 * i + 1])
    a("v_mul_u32_u24 v24, 1536, v30")
    a("v_mul_u32_u24 v25, 24, v29")
    a("v_add_u32 v24, v24, v25")
    for b in range(2):
        for k in range(3):
            a(f"ds_write_b64 v24, v[{A+6*b+2*k}:{A+6*b+2*k+1}] offset:{5120+b*768+k*8}")
    a("s_waitcnt lgkmcnt(0)")
    a("s_barrier")
    a("v_lshlrev_b32 v24, 2, v0")
    a("s_mul_i32 s22, s2, 1536")
    a(f"s_add_u32 s22, s22, {QP_OFF}")
    for part in range(2):
        if part == 1:
            a("v_cmp_gt_u32 vcc, 128, v0")
            a("s_and_saveexec_b64 s[24:25], vcc")
            a("s_cbranch_execz kq_done")
        for w in range(8):
            a(f"ds_read_b32 v{32+w}, v24 offset:{5120+w*1536+part*1024}")
        a("s_waitcnt lgkmcnt(0)")
        a("v_add_f32 v32, v32, v33")
        for w in range(2, 8):
            a(f"v_add_f32 v32, v32, v{32+w}")
        a(f"buffer_store_dword v32, v24, s[16:19], s22 offen offset:{part*1024}")
    a.label("kq_done")
    a("s_endpgm")
    return name, 104


def k_a(a):
    name = "ka_kernel"
    kernel_header(a, name)
    a("s_cmp_ge_u32 s2, 512")
    a("s_cbranch_scc1 ka_done")
    load_srds(a, [("k", 8), ("v", 12), ("ws", 16)])
    prologue_ids(a)
    a("v_and_b32 v6, 15, v1")
    a("v_lshrrev_b32 v7, 4, v1")
    a("v_readfirstlane_b32 s33, v2")
    a("s_lshr_b32 s35, s2, 8")
    a("s_and_b32 s2, s2, 255")
    a("s_and_b32 s20, s2, 7")
    a("s_lshl_b32 s20, s20, 2")
    a("s_lshr_b32 s21, s2, 3")
    a("s_and_b32 s22, s21, 3")
    a("s_add_u32 s20, s20, s22")
    a("s_lshr_b32 s21, s2, 5")
    AUX = 73728
    a("s_mov_b32 s22, s35")
    a("s_mov_b32 s23, s33")
    a("s_mul_i32 s30, s20, 12288")
    a("s_mul_i32 s31, s22, 768")
    a("s_add_u32 s30, s30, s31")
    a(f"s_add_u32 s30, s30, {QP_OFF}")
    QR = 96
    for sp in range(8):
        for k in range(3):
            a(f"buffer_load_dword v{QR+sp*3+k}, v3, s[16:19], s30 offen offset:{k*256}")
        if sp < 7:
            a("s_add_u32 s30, s30, 1536")
    for i in range(6):
        a(f"v_add_u32 v10, {64*i}, v1")
        a("v_mul_u32_u24 v11, 2731, v10")
        a("v_lshrrev_b32 v11, 16, v11")
        a("v_mul_u32_u24 v12, 24, v11")
        a("v_sub_u32 v13, v10, v12")
        a("v_lshrrev_b32 v11, 1, v11")
        a("v_and_b32 v11, 3, v11")
        a("v_lshlrev_b32 v11, 1, v11")
        a("v_xor_b32 v13, v13, v11")
        a("v_add_u32 v13, v13, v12")
        a(f"v_add_u32 v13, {64-64*i}, v13" if i == 0 else f"v_subrev_u32 v13, {64*i-64}, v13")
        a(f"v_lshlrev_b32 v{16+i}, 4, v13")
    a("s_lshl_b32 s27, s22, 5")
    a("s_add_u32 s27, s27, s20")
    a("s_mul_i32 s24, s27, 3145728")
    a("s_mul_i32 s25, s21, 98304")
    a("s_add_u32 s24, s24, s25")
    a("s_mul_i32 s25, s23, 24576")
    a("s_add_u32 s24, s24, s25")
    a("s_add_u32 s24, s24, 2358272")
    a("s_mul_i32 s34, s33, 18432")

    def dma(tile):
        srd = 8 if tile < 4 else 12
        t = tile % 4
        slot = tile % 3
        a(f"s_add_u32 s26, s34, {slot*6144}")
        a("s_mov_b32 m0, s26")
        a(f"s_add_u32 s25, s24, {t*6144}")
        for i in range(4):
            a(f"buffer_load_dwordx4 v{16+i}, s[{srd}:{srd+3}], s25 offen offset:{i*1024} nt lds")
        a(f"s_add_u32 s26, s34, {slot*6144+4096}")
        a("s_mov_b32 m0, s26")
        a(f"s_add_u32 s25, s24, {t*6144+4096}")
        for i in range(4, 6):
            a(f"buffer_load_dwordx4 v{16+i}, s[{srd}:{srd+3}], s25 offen offset:{(i-4)*1024} nt lds")

    for t in range(3):
        dma(t)
    a("v_mul_u32_u24 v15, 18432, v2")
    a("v_lshrrev_b32 v22, 1, v6")
    a("v_and_b32 v22, 3, v22")
    a("v_lshlrev_b32 v22, 1, v22")
    a("v_mul_u32_u24 v23, 24, v6")
    for m in range(6):
        a(f"v_add_u32 v30, {4*m}, v7")
        a("v_xor_b32 v30, v30, v22")
        a("v_add_u32 v30, v30, v23")
        a(f"v_lshl_add_u32 v{24+m}, v30, 4, v15")
    a("v_lshrrev_b32 v10, 2, v6")
    a("v_and_b32 v11, 3, v6")
    a("v_and_b32 v12, 1, v7")
    a("v_lshrrev_b32 v13, 1, v7")
    a("v_mul_u32_u24 v14, 6144, v13")
    a("v_add_u32 v14, v14, v15")
    a("v_lshl_add_u32 v14, v11, 3, v14")
    for half in range(2):
        a("v_lshlrev_b32 v30, 3, v12")
        a(f"v_add_u32 v30, {half*4}, v30")
        a("v_add_u32 v30, v30, v10")
        a("v_lshrrev_b32 v31, 1, v30")
        a("v_and_b32 v31, 3, v31")
        a("v_mul_u32_u24 v30, 384, v30")
        a("v_add_u32 v30, v30, v14")
        for e in range(4):
            a(f"v_xor_b32 v40, {e}, v31")
            a(f"v_lshl_add_u32 v{32+half*4+e}, v40, 5, v30")
    a(f"s_mov_b32 s28, {f32hex(SCALE)}")
    a(f"s_mov_b32 s29, {f32hex(LOG2E)}")
    a("v_lshlrev_b32 v41, 9, v2")
    a(f"v_add_u32 v41, {AUX}, v41")
    a("v_lshl_add_u32 v42, v1, 1, v41")
    a("v_lshl_add_u32 v43, v7, 4, v41")
    a("s_waitcnt vmcnt(18)")
    for k in range(3):
        for sp in range(1, 8):
            a(f"v_add_f32 v{QR+k}, v{QR+k}, v{QR+sp*3+k}")
        a(f"v_cvt_pk_bf16_f32 v{QR+k}, v{QR+k}, v{QR+k}")
        a(f"ds_write_b16 v42, v{QR+k} offset:{k*128}")
    a("s_waitcnt lgkmcnt(0)")
    Q = 64
    for j in range(6):
        a(f"ds_read_b128 v[{Q+4*j}:{Q+4*j+3}], v43 offset:{j*64}")
    TB = 96
    D = 44
    for t in range(4):
        a("s_waitcnt vmcnt(12)")
        slot = t % 3
        for m in range(6):
            a(f"ds_read_b128 v[{TB+4*m}:{TB+4*m+3}], v{24+m} offset:{slot*6144}")
        a("s_waitcnt lgkmcnt(0)")
        dma(t + 3)
        for j in range(6):
            c = "0" if j == 0 else f"v[{D+4*t}:{D+4*t+3}]"
            a(f"v_mfma_f32_16x16x32_bf16 v[{D+4*t}:{D+4*t+3}], v[{Q+4*j}:{Q+4*j+3}], v[{TB+4*j}:{TB+4*j+3}], {c}")
        a("s_nop 3")
    a("s_nop 7")
    for tt in range(4):
        s_ = D + 4 * tt
        bf16r(a, s_, s_)
        a(f"v_mul_f32 v{s_}, s28, v{s_}")
        bf16r(a, s_, s_)
    a(f"v_max_f32 v11, v{D}, v{D+4}")
    a(f"v_max3_f32 v11, v11, v{D+8}, v{D+12}")
    for r in (1, 2, 4, 8):
        a("s_nop 1")
        a(f"v_max_f32_dpp v11, v11, v11 row_ror:{r} row_mask:0xf bank_mask:0xf")
    for tt in range(4):
        s_ = D + 4 * tt
        a(f"v_sub_f32 v{s_}, v{s_}, v11")
        a(f"v_mul_f32 v{s_}, s29, v{s_}")
        a(f"v_exp_f32 v{s_}, v{s_}")
    a("s_nop 0")
    a(f"v_add_f32 v12, v{D}, v{D+4}")
    a(f"v_add_f32 v12, v12, v{D+8}")
    a(f"v_add_f32 v12, v12, v{D+12}")
    a(f"v_mov_b32 v30, v{D}")
    for gg in range(1, 4):
        a(f"v_cmp_eq_u32 vcc, {gg}, v7")
        a("s_nop 1")
        a(f"v_cndmask_b32 v30, v30, v{D+4*gg}, vcc")
    a("v_cvt_pk_bf16_f32 v30, v30, v30")
    a("ds_write_b16 v42, v30 offset:384")
    for r in (1, 2, 4, 8):
        a("s_nop 1")
        a(f"v_add_f32_dpp v12, v12, v12 row_ror:{r} row_mask:0xf bank_mask:0xf")
    a("s_waitcnt lgkmcnt(0)")
    PA = 60
    a(f"ds_read_b128 v[{PA}:{PA+3}], v43 offset:384")
    a(f"ds_read_b128 v[64:67], v43 offset:{384+64}")
    O = 120
    for u in range(2):
        a(f"s_waitcnt vmcnt({6 if u == 0 else 0})")
        pa = PA if u == 0 else 64
        for q4 in range(3):
            for e in range(4):
                off = q4 * 128 + (6144 if u == 0 else 0)
                a(f"ds_read_b64_tr_b16 v[{TB+4*e}:{TB+4*e+1}], v{32+e} offset:{off}")
                a(f"ds_read_b64_tr_b16 v[{TB+4*e+2}:{TB+4*e+3}], v{36+e} offset:{off}")
            a("s_waitcnt lgkmcnt(0)")
            for e in range(4):
                dt = q4 * 4 + e
                c = "0" if u == 0 else f"v[{O+4*dt}:{O+4*dt+3}]"
                a(f"v_mfma_f32_16x16x32_bf16 v[{O+4*dt}:{O+4*dt+3}], v[{pa}:{pa+3}], v[{TB+4*e}:{TB+4*e+3}], {c}")
            a("s_nop 3")
        if u == 0:
            dma(7)
    a("s_nop 7")
    a("v_mul_u32_u24 v13, 18432, v2")
    a("v_lshl_add_u32 v14, v1, 2, v13")
    a("v_mov_b32 v18, v11")
    a("v_mov_b32 v19, v12")
    a("v_cmp_gt_u32 vcc, 16, v1")
    a("s_and_saveexec_b64 s[30:31], vcc")
    for dt in range(12):
        a(f"ds_write_b32 v14, v{O+4*dt} offset:{dt*64}")
    a("ds_write_b64 v13, v[18:19] offset:768")
    a("s_mov_b64 exec, s[30:31]")
    a("s_waitcnt lgkmcnt(0)")
    a("s_barrier")
    a("v_and_b32 v16, 255, v0")
    a("v_mov_b32 v15, s35")
    a("v_mov_b32 v18, 0")
    a("v_lshl_add_u32 v17, v16, 2, v18")
    for w in range(4):
        a(f"ds_read_b64 v[{20+2*w}:{21+2*w}], v18 offset:{w*18432+768}")
        a(f"ds_read_b32 v{30+w}, v17 offset:{w*18432}")
    a("s_waitcnt lgkmcnt(0)")
    a("v_max_f32 v34, v20, v22")
    a("v_max3_f32 v34, v34, v24, v26")
    for w in range(4):
        a(f"v_sub_f32 v{20+2*w}, v{20+2*w}, v34")
        a(f"v_mul_f32 v{20+2*w}, s29, v{20+2*w}")
        a(f"v_exp_f32 v{20+2*w}, v{20+2*w}")
    a("s_nop 0")
    a("v_mul_f32 v35, v20, v21")
    a("v_mul_f32 v36, v20, v30")
    for w in range(1, 4):
        a(f"v_fmac_f32 v35, v{20+2*w}, v{21+2*w}")
        a(f"v_fmac_f32 v36, v{20+2*w}, v{30+w}")
    a("v_cmp_eq_u32 vcc, 192, v16")
    a("s_nop 1")
    a("v_cndmask_b32 v36, v36, v34, vcc")
    a("v_cmp_eq_u32 vcc, 193, v16")
    a("s_nop 1")
    a("v_cndmask_b32 v36, v36, v35, vcc")
    a("v_cmp_gt_u32 vcc, 194, v16")
    a("s_and_saveexec_b64 s[30:31], vcc")
    a("s_cbranch_execz ka_done")
    a("s_lshl_b32 s22, s20, 3")
    a("s_add_u32 s22, s22, s21")
    a("s_lshl_b32 s22, s22, 10")
    a(f"s_add_u32 s22, s22, {PART_OFF}")
    a("v_lshlrev_b32 v17, 18, v15")
    a("v_lshl_add_u32 v17, v16, 2, v17")
    a("buffer_store_dword v36, v17, s[16:19], s22 offen")
    a.label("ka_done")
    a("s_endpgm")
    return name, 168


P1_OFF = 1 << 20
H_OFF = P1_OFF + 40960
P2_OFF = H_OFF + 5120


def emit_poll(a, lab, first, n, target, vtmp, voff, dbg_srd):
    a(f"v_and_b32 v{voff}, {n-1}, v1")
    a(f"v_lshlrev_b32 v{voff}, 2, v{voff}")
    a("s_mov_b32 s58, 0")
    a.label(lab)
    a(f"buffer_load_dword v{vtmp}, v{voff}, s[{dbg_srd}:{dbg_srd+3}], 0 offen offset:{first*4} sc1")
    a("s_waitcnt vmcnt(0)")
    a(f"v_cmp_ne_u32 vcc, {target}, v{vtmp}")
    a("s_add_u32 s58, s58, 1")
    a("s_nop 1")
    a(f"s_cbranch_vccz {lab}_ok")
    a("s_sleep 2")
    a("s_cmp_lt_u32 s58, 0x200000")
    a(f"s_cbranch_scc1 {lab}")
    a.label(lab + "_ok")


def emit_signal(a, idx_sgpr_or_imm, dbg_srd, v0_, v1_):
    a(f"s_lshl_b32 s59, {idx_sgpr_or_imm}, 2")
    a(f"v_mov_b32 v{v0_}, s59")
    a(f"v_mov_b32 v{v1_}, 1")
    a("v_cmp_eq_u32 vcc, 0, v1")
    a("s_and_saveexec_b64 s[56:57], vcc")
    a(f"buffer_atomic_add v{v1_}, v{v0_}, s[{dbg_srd}:{dbg_srd+3}], 0 offen")
    a("s_mov_b64 exec, s[56:57]")

def role_c(a):
    a.label("kt_role_c")
    a("s_sub_u32 s2, s2, 160")
    load_srds(a, [("x", 8), ("wg", 12), ("ws", 16), ("wu", 20), ("wd", 24), ("dbg", 60)])
    prologue_ids(a)
    a("s_and_b32 s40, s2, 7")
    a("s_mul_i32 s40, s40, 12")
    a("s_lshr_b32 s41, s2, 3")
    a("s_add_u32 s40, s40, s41")
    a("v_and_b32 v6, 1, v2")
    a("v_mul_u32_u24 v7, 1280, v6")
    a("v_add_u32 v7, v7, v3")
    a("v_lshlrev_b32 v27, 1, v7")
    a("v_and_b32 v28, 1, v0")
    a("v_lshrrev_b32 v29, 1, v0")
    a("v_mul_u32_u24 v30, 3072, v29")
    a("v_lshl_add_u32 v30, v28, 4, v30")
    a("s_lshl_b32 s43, s40, 5")
    for i in range(5):
        a(f"buffer_load_dwordx4 v[{32+4*i}:{35+4*i}], v30, s[12:15], s43 offen nt")
        a(f"buffer_load_dwordx4 v[{52+4*i}:{55+4*i}], v30, s[20:23], s43 offen nt")
        if i < 4:
            a("s_add_u32 s43, s43, 393216")
    a("v_mul_u32_u24 v31, 205, v0")
    a("v_lshrrev_b32 v31, 14, v31")
    a("v_mul_u32_u24 v98, 80, v31")
    a("v_sub_u32 v98, v0, v98")
    a("v_mul_u32_u24 v99, 1280, v31")
    a("v_lshl_add_u32 v99, v98, 4, v99")
    a("s_mul_i32 s43, s40, 20480")
    for i in range(6):
        a(f"buffer_load_dwordx4 v[{72+4*i}:{75+4*i}], v99, s[24:27], s43 offen nt")
        if i < 5:
            a("s_add_u32 s43, s43, 3840")
    a("v_readfirstlane_b32 s48, v2")
    a("s_cmp_ge_u32 s48, 2")
    a("s_cbranch_scc1 kc_noln")
    a("s_mov_b32 s58, 0")
    for i in range(5):
        a(f"buffer_load_dword v{8+i}, v7, s[8:11], 0 offen offset:{i*256}")
    PP = 164
    a.label("kc_poll")
    a(f"s_mov_b32 s42, {P1_OFF}")
    for g in range(8):
        for i in range(5):
            a(f"buffer_load_dwordx2 v[{PP+g*10+2*i}:{PP+g*10+2*i+1}], v27, s[16:19], s42 offen offset:{i*512} sc1")
        if g < 7:
            a("s_add_u32 s42, s42, 5120")
    a("s_waitcnt vmcnt(0)")
    a(f"v_max_u32 v100, v{PP}, v{PP+1}")
    for r in range(PP + 2, PP + 80, 2):
        a(f"v_max3_u32 v100, v100, v{r}, v{r+1}")
    a("v_cmp_eq_u32 vcc, -1, v100")
    a("s_add_u32 s58, s58, 1")
    a("s_nop 1")
    a("s_cbranch_vccz kc_poll_ok")
    a("s_sleep 1")
    a("s_cmp_lt_u32 s58, 0x10000")
    a("s_cbranch_scc1 kc_poll")
    a.label("kc_poll_ok")
    vals = list(range(14, 24))
    for i in range(5):
        a(f"v_lshlrev_b32 v{14+2*i}, 16, v{8+i}")
        a(f"v_and_b32 v{15+2*i}, 0xffff0000, v{8+i}")
    for e in range(10):
        for g in range(1, 8):
            a(f"v_add_f32 v{PP+e}, v{PP+e}, v{PP+g*10+e}")
        bf16r(a, PP + e, PP + e)
        a(f"v_add_f32 v{14+e}, v{14+e}, v{PP+e}")
        bf16r(a, 14 + e, 14 + e)
    a("s_cmp_lg_u32 s2, 0")
    a("s_cbranch_scc1 kc_noh")
    a(f"s_mov_b32 s42, {H_OFF}")
    for i in range(5):
        a(f"buffer_store_dwordx2 v[{14+2*i}:{15+2*i}], v27, s[16:19], s42 offen offset:{i*512} sc1")
    a("s_waitcnt vmcnt(0)")
    a.label("kc_noh")
    emit_ln(a, vals, 3, 24, 25, 26, 5, sbase=52)
    a("v_lshlrev_b32 v24, 4, v1")
    a("v_lshl_add_u32 v24, v6, 2, v24")
    for i in range(5):
        a(f"ds_write_b32 v24, v{14+2*i} offset:{i*1024}")
        a(f"ds_write_b32 v24, v{15+2*i} offset:{i*1024+8}")
    a.label("kc_noln")
    a("s_waitcnt lgkmcnt(0)")
    a("s_barrier")
    a("v_lshlrev_b32 v24, 3, v29")
    for i in range(5):
        a(f"ds_read_b64 v[{120+2*i}:{121+2*i}], v24 offset:{i*1024}")
    A = 132
    for r in range(A, A + 32):
        a(f"v_mov_b32 v{r}, 0")
    a("s_waitcnt lgkmcnt(0)")
    for i in range(5):
        for m in range(2):
            a(f"s_waitcnt vmcnt({6 + (4-i)*2 + (1-m)})")
            for r in range(4):
                base = A + m * 16
                unpack_fma(a, (32 if m == 0 else 52) + 4 * i + r,
                           [(base + 2 * r, base + 2 * r + 1), (base + 8 + 2 * r, base + 9 + 2 * r)],
                           [120 + 2 * i, 121 + 2 * i])
    RED = 5120
    a("v_lshlrev_b32 v24, 8, v29")
    a("v_lshl_add_u32 v24, v28, 5, v24")
    for mb in range(4):
        a(f"ds_write_b128 v24, v[{A+8*mb}:{A+8*mb+3}] offset:{RED+mb*64}")
        a(f"ds_write_b128 v24, v[{A+8*mb+4}:{A+8*mb+7}] offset:{RED+mb*64+16}")
    a("s_waitcnt lgkmcnt(0)")
    a("s_barrier")
    a("v_lshlrev_b32 v24, 13, v2")
    a("v_add_u32 v24, v24, v3")
    for r in range(32):
        a(f"ds_read_b32 v{A+r}, v24 offset:{RED+r*256}")
    a("s_waitcnt lgkmcnt(0)")
    a(f"v_add_f32 v25, v{A}, v{A+1}")
    for r in range(2, 32):
        a(f"v_add_f32 v25, v25, v{A+r}")
    RED2 = RED + 32768
    a("v_lshlrev_b32 v24, 2, v0")
    a(f"ds_write_b32 v24, v25 offset:{RED2}")
    a("s_waitcnt lgkmcnt(0)")
    a("s_barrier")
    GL = RED2 + 1024
    a("v_cmp_gt_u32 vcc, 36, v0")
    a("s_and_saveexec_b64 s[44:45], vcc")
    a("s_cbranch_execz kc_skipg")
    a("v_lshlrev_b32 v24, 2, v0")
    for w in range(4):
        a(f"ds_read_b32 v{A+w}, v24 offset:{RED2+w*256}")
        a(f"ds_read_b32 v{A+4+w}, v24 offset:{RED2+w*256+128}")
    a("s_waitcnt lgkmcnt(0)")
    a(f"v_add_f32 v25, v{A}, v{A+1}")
    a(f"v_add_f32 v25, v25, v{A+2}")
    a(f"v_add_f32 v25, v25, v{A+3}")
    a(f"v_add_f32 v26, v{A+4}, v{A+5}")
    a(f"v_add_f32 v26, v26, v{A+6}")
    a(f"v_add_f32 v26, v26, v{A+7}")
    bf16r(a, 25, 25)
    bf16r(a, 26, 26)
    a("v_mul_f32 v4, v25, v25")
    a("v_mul_f32 v4, v4, v25")
    a(f"v_mov_b32 v5, {f32hex(0.044715)}")
    a("v_fma_f32 v4, v4, v5, v25")
    a(f"v_mul_f32 v4, {f32hex(2.0*math.sqrt(2.0/math.pi)*LOG2E)}, v4")
    a("v_exp_f32 v4, v4")
    a("s_nop 0")
    a("v_add_f32 v4, 1.0, v4")
    a("v_rcp_f32 v4, v4")
    a("s_nop 0")
    a("v_fma_f32 v4, v4, -2.0, 2.0")
    a("v_mul_f32 v4, 0.5, v4")
    a("v_mul_f32 v4, v4, v25")
    bf16r(a, 4, 4)
    a("v_mul_f32 v4, v4, v26")
    bf16r(a, 4, 4)
    a("v_cmp_gt_u32 vcc, 32, v0")
    a("s_nop 1")
    a("v_cndmask_b32 v4, 0, v4, vcc")
    a("v_and_b32 v5, 15, v0")
    a("v_lshlrev_b32 v5, 3, v5")
    a("v_lshrrev_b32 v24, 4, v0")
    a("v_lshl_add_u32 v5, v24, 2, v5")
    a("v_lshlrev_b32 v24, 2, v0")
    a("v_cndmask_b32 v5, v24, v5, vcc")
    a(f"ds_write_b32 v5, v4 offset:{GL}")
    a.label("kc_skipg")
    a("s_mov_b64 exec, s[44:45]")
    a("s_waitcnt lgkmcnt(0)")
    a("s_barrier")
    a("v_lshlrev_b32 v24, 3, v31")
    for i in range(6):
        a(f"ds_read_b64 v[{120+2*i}:{121+2*i}], v24 offset:{GL+i*24}")
    for r in range(A, A + 16):
        a(f"v_mov_b32 v{r}, 0")
    a("s_waitcnt lgkmcnt(0)")
    a("s_waitcnt vmcnt(0)")
    for i in range(6):
        for r in range(4):
            unpack_fma(a, 72 + 4 * i + r,
                       [(A + 2 * r, A + 2 * r + 1), (A + 8 + 2 * r, A + 9 + 2 * r)],
                       [120 + 2 * i, 121 + 2 * i])
    a("v_mul_u32_u24 v24, 5120, v31")
    a("v_lshl_add_u32 v24, v98, 5, v24")
    a("v_cmp_gt_u32 vcc, 240, v0")
    a("s_and_saveexec_b64 s[44:45], vcc")
    a(f"ds_write_b128 v24, v[{A}:{A+3}] offset:{RED}")
    a(f"ds_write_b128 v24, v[{A+4}:{A+7}] offset:{RED+16}")
    a(f"ds_write_b128 v24, v[{A+8}:{A+11}] offset:{RED+2560}")
    a(f"ds_write_b128 v24, v[{A+12}:{A+15}] offset:{RED+2560+16}")
    a("s_mov_b64 exec, s[44:45]")
    a("s_waitcnt lgkmcnt(0)")
    a("s_barrier")
    a("v_lshlrev_b32 v24, 2, v0")
    for k in range(5):
        for r in range(3):
            a(f"ds_read_b32 v{A+k*3+r}, v24 offset:{RED+r*5120+k*1024}")
    a("s_waitcnt lgkmcnt(0)")
    a("s_mul_i32 s42, s40, 5120")
    a(f"s_add_u32 s42, s42, {P2_OFF}")
    for k in range(5):
        a(f"v_add_f32 v{A+k*3}, v{A+k*3}, v{A+k*3+1}")
        a(f"v_add_f32 v{A+k*3}, v{A+k*3}, v{A+k*3+2}")
        if k == 4:
            a("s_add_u32 s42, s42, 4096")
        a(f"buffer_store_dword v{A+k*3}, v24, s[16:19], s42 offen offset:{(k%4)*1024} sc1")
    a("s_endpgm")


def role_d(a):
    a.label("kt_role_d")
    a("s_sub_u32 s2, s2, 256")
    load_srds(a, [("ws", 16), ("out", 28), ("dbg", 60)])
    prologue_ids(a)
    a("s_mov_b32 s58, 0")
    a("s_movk_i32 s20, 5120")
    a("v_mul_lo_u32 v6, v2, s20")
    a("v_mul_u32_u24 v6, 24, v6")
    a("v_add_u32 v6, v6, v3")
    a("s_lshl_b32 s21, s2, 8")
    a.label("kd_poll")
    a(f"s_add_u32 s22, s21, {P2_OFF}")
    for i in range(24):
        a(f"buffer_load_dword v{16+i}, v6, s[16:19], s22 offen sc1")
        if i < 23:
            a("s_add_u32 s22, s22, 5120")
    a(f"s_add_u32 s22, s21, {H_OFF}")
    a("buffer_load_dword v8, v3, s[16:19], s22 offen sc1")
    a("s_waitcnt vmcnt(0)")
    a("v_max_u32 v40, v8, v16")
    a("v_max_u32 v40, v40, v17")
    for r in range(18, 40, 2):
        a(f"v_max3_u32 v40, v40, v{r}, v{r+1}")
    a("v_cmp_eq_u32 vcc, -1, v40")
    a("s_add_u32 s58, s58, 1")
    a("s_nop 1")
    a("s_cbranch_vccz kd_poll_ok")
    a("s_sleep 1")
    a("s_cmp_lt_u32 s58, 0x10000")
    a("s_cbranch_scc1 kd_poll")
    a.label("kd_poll_ok")
    a("v_add_f32 v9, v16, v17")
    for i in range(2, 24):
        a(f"v_add_f32 v9, v9, v{16+i}")
    a("v_lshlrev_b32 v10, 2, v0")
    a("ds_write_b32 v10, v9")
    a("s_waitcnt lgkmcnt(0)")
    a("s_barrier")
    a("v_cmp_gt_u32 vcc, 64, v0")
    a("s_and_saveexec_b64 s[22:23], vcc")
    a("s_cbranch_execz kt_done")
    for w in range(4):
        a(f"ds_read_b32 v{16+w}, v3 offset:{w*256}")
    a("s_waitcnt lgkmcnt(0) vmcnt(0)")
    a("v_add_f32 v9, v16, v17")
    a("v_add_f32 v9, v9, v18")
    a("v_add_f32 v9, v9, v19")
    bf16r(a, 9, 9)
    a("v_add_f32 v9, v9, v8")
    a("v_cvt_pk_bf16_f32 v9, v9, v9")
    a("v_lshlrev_b32 v10, 1, v1")
    a("s_lshl_b32 s21, s2, 7")
    a("buffer_store_short v9, v10, s[28:31], s21 offen")
    a("s_endpgm")


def k_t(a):
    name = "kt_kernel"
    kernel_header(a, name)
    a("s_cmp_ge_u32 s2, 276")
    a("s_cbranch_scc1 kt_done")
    a("s_cmp_ge_u32 s2, 256")
    a("s_cbranch_scc1 kt_role_d")
    a("s_cmp_ge_u32 s2, 160")
    a("s_cbranch_scc1 kt_role_c")
    load_srds(a, [("wo", 12), ("ws", 16), ("dbg", 60)])
    prologue_ids(a)
    a("s_and_b32 s20, s2, 7")
    a("s_lshr_b32 s21, s2, 3")
    a("v_lshrrev_b32 v6, 5, v1")
    a("v_and_b32 v7, 31, v1")
    a("v_lshlrev_b32 v6, 18, v6")
    a("v_lshl_add_u32 v6, v7, 10, v6")
    a("s_lshl_b32 s22, s20, 15")
    a(f"s_add_u32 s22, s22, {PART_OFF}")
    a("buffer_load_dwordx2 v[8:9], v6, s[16:19], s22 offen offset:768")
    O = 64
    for k in range(3):
        a(f"v_add_u32 v10, {256*k}, v0")
        a("v_mul_u32_u24 v11, 21846, v10")
        a("v_lshrrev_b32 v11, 22, v11")
        a("v_mul_u32_u24 v12, 192, v11")
        a("v_sub_u32 v12, v10, v12")
        a(f"v_lshlrev_b32 v{13+k}, 13, v11")
        a(f"v_lshl_add_u32 v{13+k}, v12, 2, v{13+k}")
        a(f"v_lshlrev_b32 v{16+k}, 5, v11")
    a("s_add_u32 s23, s22, 4096")
    a("s_add_u32 s24, s22, 262144")
    a("s_add_u32 s25, s24, 4096")
    for k in range(3):
        for b in range(2):
            for sp in range(8):
                sreg = 22 + b * 2 + (sp >= 4)
                a(f"buffer_load_dword v{O+(k*2+b)*8+sp}, v{13+k}, s[16:19], s{sreg} offen offset:{(sp%4)*1024}")
    a("v_and_b32 v28, 3, v0")
    a("v_lshrrev_b32 v29, 2, v0")
    a("v_mul_u32_u24 v30, 1280, v29")
    a("v_lshl_add_u32 v30, v28, 4, v30")
    a("s_mul_i32 s26, s20, 983040")
    a("s_lshl_b32 s27, s21, 6")
    a("s_add_u32 s26, s26, s27")
    W = 112
    for i in range(12):
        a(f"buffer_load_dwordx4 v[{W+4*i}:{W+4*i+3}], v30, s[12:15], s26 offen nt")
        if i < 11:
            a("s_add_u32 s26, s26, 81920")
    a(f"s_mov_b32 s29, {f32hex(LOG2E)}")
    a("s_waitcnt vmcnt(60)")
    a("v_mov_b32 v10, v8")
    for r in (1, 2, 4):
        a("s_nop 1")
        a(f"v_max_f32_dpp v10, v10, v10 row_shr:{r} row_mask:0xf bank_mask:0xf" if False else
          f"ds_swizzle_b32 v11, v10 offset:{(r<<10)|0x1f}")
        a("s_waitcnt lgkmcnt(0)")
        a("v_max_f32 v10, v10, v11")
    a("v_sub_f32 v8, v8, v10")
    a("v_mul_f32 v8, s29, v8")
    a("v_exp_f32 v8, v8")
    a("s_nop 0")
    a("v_mul_f32 v9, v8, v9")
    for r in (1, 2, 4):
        a(f"ds_swizzle_b32 v11, v9 offset:{(r<<10)|0x1f}")
        a("s_waitcnt lgkmcnt(0)")
        a("v_add_f32 v9, v9, v11")
    a("v_rcp_f32 v9, v9")
    a("s_nop 0")
    a("v_mul_f32 v8, v8, v9")
    a("ds_write_b32 v3, v8")
    a("s_waitcnt lgkmcnt(0)")
    a("s_barrier")
    a("s_waitcnt vmcnt(12)")
    OL = 256
    for k in range(3):
        for b in range(2):
            a(f"ds_read_b128 v[20:23], v{16+k} offset:{b*128}")
            a(f"ds_read_b128 v[24:27], v{16+k} offset:{b*128+16}")
            a("s_waitcnt lgkmcnt(0)")
            base = O + (k * 2 + b) * 8
            a(f"v_mul_f32 v{8+b}, v20, v{base}")
            for sp in range(1, 8):
                a(f"v_fmac_f32 v{8+b}, v{20+sp}, v{base+sp}")
            bf16r(a, 8 + b, 8 + b)
        a("v_lshlrev_b32 v10, 3, v0")
        a(f"ds_write_b64 v10, v[8:9] offset:{OL+k*2048}")
    a("s_waitcnt lgkmcnt(0)")
    a("s_barrier")
    a("v_lshlrev_b32 v24, 3, v29")
    X = 64
    for i in range(12):
        a(f"ds_read_b64 v[{X+2*i}:{X+2*i+1}], v24 offset:{OL+i*512}")
    A = 96
    for r in range(A, A + 16):
        a(f"v_mov_b32 v{r}, 0")
    a("s_waitcnt lgkmcnt(0)")
    for i in range(12):
        a(f"s_waitcnt vmcnt({11-i})")
        for r in range(4):
            unpack_fma(a, W + 4 * i + r, [(A + 2 * r, A + 1 + 2 * r), (A + 8 + 2 * r, A + 9 + 2 * r)],
                       [X + 2 * i, X + 2 * i + 1])
    RED = 256 + 6144
    a("v_lshlrev_b32 v24, 8, v29")
    a("v_lshl_add_u32 v24, v28, 5, v24")
    a(f"ds_write_b128 v24, v[{A}:{A+3}] offset:{RED}")
    a(f"ds_write_b128 v24, v[{A+4}:{A+7}] offset:{RED+16}")
    a(f"ds_write_b128 v24, v[{A+8}:{A+11}] offset:{RED+128}")
    a(f"ds_write_b128 v24, v[{A+12}:{A+15}] offset:{RED+128+16}")
    a("s_waitcnt lgkmcnt(0)")
    a("s_barrier")
    a("v_lshlrev_b32 v24, 12, v2")
    a("v_add_u32 v24, v24, v3")
    for r in range(16):
        a(f"ds_read_b32 v{X+r}, v24 offset:{RED+r*256}")
    a("s_waitcnt lgkmcnt(0)")
    a(f"v_add_f32 v25, v{X}, v{X+1}")
    for r in range(2, 16):
        a(f"v_add_f32 v25, v25, v{X+r}")
    RED2 = RED + 16384
    a("v_lshlrev_b32 v24, 2, v0")
    a(f"ds_write_b32 v24, v25 offset:{RED2}")
    a("s_waitcnt lgkmcnt(0)")
    a("s_barrier")
    a("v_cmp_gt_u32 vcc, 64, v0")
    a("s_and_saveexec_b64 s[22:23], vcc")
    a("s_cbranch_execz kt_done")
    for w in range(4):
        a(f"ds_read_b32 v{X+w}, v3 offset:{RED2+w*256}")
    a("s_waitcnt lgkmcnt(0)")
    a(f"v_add_f32 v25, v{X}, v{X+1}")
    a(f"v_add_f32 v25, v25, v{X+2}")
    a(f"v_add_f32 v25, v25, v{X+3}")
    a("v_lshrrev_b32 v26, 5, v1")
    a("v_mul_u32_u24 v26, 2560, v26")
    a("v_and_b32 v27, 31, v1")
    a("v_lshl_add_u32 v26, v27, 2, v26")
    a("s_mul_i32 s27, s20, 5120")
    a("s_lshl_b32 s28, s21, 7")
    a("s_add_u32 s27, s27, s28")
    a(f"s_add_u32 s27, s27, {P1_OFF}")
    a("buffer_store_dword v25, v26, s[16:19], s27 offen sc1")
    a("s_endpgm")
    role_c(a)
    role_d(a)
    a.label("kt_done")
    a("s_endpgm")
    return name, 244


def main(out):
    a = Asm()
    hdr = open("cdna_kernels/" + NAME + ".s.ref").read().split("; Override launch geometry")[0]
    launches = [
        ("kq_kernel", 256, 5120 + 12288),
        ("ka_kernel", 512, 73728 + 2048),
        ("kt_kernel", 276, 5120 + 32768 + 1024 + 256),
    ]
    txt = hdr
    for k, g, l in launches:
        blk = 256
        txt += f"; @launch kernel={k} grid=({g},1,1) block=({blk},1,1) lds={l}\n"
    txt += '.amdgcn_target "amdgcn-amd-amdhsa--gfx950"\n.text\n'
    descs = []
    for fn in (k_q, k_a, k_t):
        n, v = fn(a)
        descs.append(kernel_desc(n, v))
    txt += a.text()
    txt += '.section .rodata,"a"\n.p2align 6\n'
    for d in descs:
        txt += ".p2align 6\n" + d
    open(out, "w").write(txt)


if __name__ == "__main__":
    main(sys.argv[1] if len(sys.argv) > 1 else "cdna_kernels/" + NAME + ".s")
```

```python
import math
import sys
from common import *

NAME = "sequential_preLN__sliding_block_cached__geglu_ffn__decode"
Q_OFF = 0
ACC1_OFF = 32768
ACC2_OFF = 40960
PART_OFF = 65536
NSPLIT = 8
DEBUG = False
LOG2E = math.log2(math.e)
SCALE = 192 ** -0.5


def f32hex(x):
    import struct
    return "0x%08x" % struct.unpack("<I", struct.pack("<f", x))[0]


def unpack_fma(a, wreg, accs, xs):
    a(f"v_lshlrev_b32 v4, 16, v{wreg}")
    a(f"v_and_b32 v5, 0xffff0000, v{wreg}")
    for (lo, hi), x in zip(accs, xs):
        a(f"v_fmac_f32 v{lo}, v{x}, v4")
        a(f"v_fmac_f32 v{hi}, v{x}, v5")


def prologue_ids(a):
    a("v_and_b32 v1, 63, v0")
    a("v_lshrrev_b32 v2, 6, v0")
    a("v_lshlrev_b32 v3, 2, v1")


QP_OFF = 4 << 20


def k_q(a):
    name = "kqa_kernel"
    kernel_header(a, name)
    a("s_cmp_ge_u32 s2, 768")
    a("s_cbranch_scc1 ka_done")
    a("s_cmp_ge_u32 s2, 256")
    a("s_cbranch_scc1 ka_role")
    load_srds(a, [("x", 8), ("wq", 12), ("ws", 16), ("dbg", 60)])
    prologue_ids(a)
    a("s_lshr_b32 s20, s2, 3")
    a("s_and_b32 s21, s2, 7")
    a("v_and_b32 v6, 1, v2")
    a("v_mul_u32_u24 v7, 1280, v6")
    a("v_add_u32 v7, v7, v3")
    for i in range(5):
        a(f"buffer_load_dword v{8+i}, v7, s[8:11], 0 offen offset:{i*256}")
    a("v_lshrrev_b32 v28, 5, v1")
    a("v_and_b32 v29, 31, v1")
    a("v_lshl_add_u32 v30, v2, 1, v28")
    a("v_mul_u32_u24 v31, 12288, v30")
    a("v_mul_u32_u24 v27, 12, v29")
    a("v_add_u32 v31, v31, v27")
    a("s_mul_i32 s22, s20, 384")
    a("s_mul_i32 s23, s21, 983040")
    a("s_add_u32 s22, s22, s23")
    WQ = 32
    for i in range(10):
        a(f"buffer_load_dwordx3 v[{WQ+4*i}:{WQ+4*i+2}], v31, s[12:15], s22 offen nt")
        if i < 9:
            a("s_add_u32 s22, s22, 98304")
    for r in range(92, 96):
        a(f"v_mov_b32 v{r}, -1")
    a("v_lshlrev_b32 v96, 4, v0")
    a("s_mul_i32 s23, s2, 2100")
    a(f"s_add_u32 s23, s23, {P1_OFF}")
    a("v_cmp_gt_u32 vcc, 132, v0")
    a("s_and_saveexec_b64 s[24:25], vcc")
    a("s_cbranch_execz kq_nofill")
    a("buffer_store_dwordx4 v[92:95], v96, s[16:19], s23 offen")
    a.label("kq_nofill")
    a("s_mov_b64 exec, s[24:25]")
    a("s_waitcnt vmcnt(10)")
    vals = list(range(14, 24))
    for i in range(5):
        a(f"v_lshlrev_b32 v{14+2*i}, 16, v{8+i}")
        a(f"v_and_b32 v{15+2*i}, 0xffff0000, v{8+i}")
    emit_ln(a, vals, 3, 24, 25, 26, 27, sbase=40)
    a("v_lshlrev_b32 v24, 4, v1")
    a("v_lshl_add_u32 v24, v6, 2, v24")
    for i in range(5):
        a(f"ds_write_b32 v24, v{14+2*i} offset:{i*1024}")
        a(f"ds_write_b32 v24, v{15+2*i} offset:{i*1024+8}")
    a("s_waitcnt lgkmcnt(0)")
    a("s_barrier")
    a("s_mul_i32 s23, s21, 640")
    a("v_lshlrev_b32 v24, 3, v30")
    a("v_add_u32 v24, s23, v24")
    XN = 72
    for i in range(10):
        a(f"ds_read_b64 v[{XN+2*i}:{XN+2*i+1}], v24 offset:{i*64}")
    A = 92
    for r in range(A, A + 12):
        a(f"v_mov_b32 v{r}, 0")
    a("s_waitcnt lgkmcnt(0)")
    for i in range(10):
        a(f"s_waitcnt vmcnt({9-i})")
        for r in range(3):
            unpack_fma(a, WQ + 4 * i + r, [(A + 2 * r, A + 1 + 2 * r), (A + 6 + 2 * r, A + 7 + 2 * r)],
                       [XN + 2 * i, XN + 2 * i + 1])
    a("v_mul_u32_u24 v24, 1536, v30")
    a("v_mul_u32_u24 v25, 24, v29")
    a("v_add_u32 v24, v24, v25")
    for b in range(2):
        for k in range(3):
            a(f"ds_write_b64 v24, v[{A+6*b+2*k}:{A+6*b+2*k+1}] offset:{5120+b*768+k*8}")
    a("s_waitcnt lgkmcnt(0)")
    a("s_barrier")
    a("v_lshlrev_b32 v24, 2, v0")
    a("s_mul_i32 s22, s2, 1536")
    a(f"s_add_u32 s22, s22, {QP_OFF}")
    for part in range(2):
        if part == 1:
            a("v_cmp_gt_u32 vcc, 128, v0")
            a("s_and_saveexec_b64 s[24:25], vcc")
            a("s_cbranch_execz kq_fin")
        for w in range(8):
            a(f"ds_read_b32 v{32+w}, v24 offset:{5120+w*1536+part*1024}")
        a("s_waitcnt lgkmcnt(0)")
        a("v_add_f32 v32, v32, v33")
        for w in range(2, 8):
            a(f"v_add_f32 v32, v32, v{32+w}")
        a(f"buffer_store_dword v32, v24, s[16:19], s22 offen offset:{part*1024} sc1")
    a.label("kq_fin")
    a("s_mov_b64 exec, -1")
    a("s_waitcnt vmcnt(0)")
    a("s_barrier")
    a("v_cmp_eq_u32 vcc, 0, v0")
    a("s_and_saveexec_b64 s[24:25], vcc")
    a("s_cbranch_execz ka_done")
    a("v_mov_b32 v32, 1")
    a("v_mov_b32 v33, s2")
    a("buffer_store_byte v32, v33, s[60:63], 0 offen sc1")
    a("s_endpgm")
    k_a(a)
    return name, 168


def k_a(a):
    a.label("ka_role")
    a("s_sub_u32 s2, s2, 256")
    load_srds(a, [("k", 8), ("v", 12), ("ws", 16), ("dbg", 60)])
    prologue_ids(a)
    a("v_and_b32 v6, 15, v1")
    a("v_lshrrev_b32 v7, 4, v1")
    a("v_readfirstlane_b32 s33, v2")
    a("s_lshr_b32 s35, s2, 8")
    a("s_and_b32 s2, s2, 255")
    a("s_and_b32 s20, s2, 7")
    a("s_lshl_b32 s20, s20, 2")
    a("s_lshr_b32 s21, s2, 3")
    a("s_and_b32 s22, s21, 3")
    a("s_add_u32 s20, s20, s22")
    a("s_lshr_b32 s21, s2, 5")
    AUX = 73728
    a("s_mov_b32 s22, s35")
    a("s_mov_b32 s23, s33")
    a("s_mul_i32 s30, s20, 12288")
    a("s_mul_i32 s31, s22, 768")
    a("s_add_u32 s30, s30, s31")
    a(f"s_add_u32 s30, s30, {QP_OFF}")
    QR = 96
    for i in range(6):
        a(f"v_add_u32 v10, {64*i}, v1")
        a("v_mul_u32_u24 v11, 2731, v10")
        a("v_lshrrev_b32 v11, 16, v11")
        a("v_mul_u32_u24 v12, 24, v11")
        a("v_sub_u32 v13, v10, v12")
        a("v_lshrrev_b32 v11, 1, v11")
        a("v_and_b32 v11, 3, v11")
        a("v_lshlrev_b32 v11, 1, v11")
        a("v_xor_b32 v13, v13, v11")
        a("v_add_u32 v13, v13, v12")
        a(f"v_add_u32 v13, {64-64*i}, v13" if i == 0 else f"v_subrev_u32 v13, {64*i-64}, v13")
        a(f"v_lshlrev_b32 v{16+i}, 4, v13")
    a("s_lshl_b32 s27, s22, 5")
    a("s_add_u32 s27, s27, s20")
    a("s_mul_i32 s24, s27, 3145728")
    a("s_mul_i32 s25, s21, 98304")
    a("s_add_u32 s24, s24, s25")
    a("s_mul_i32 s25, s23, 24576")
    a("s_add_u32 s24, s24, s25")
    a("s_add_u32 s24, s24, 2358272")
    a("s_mul_i32 s34, s33, 18432")

    def dma(tile):
        srd = 8 if tile < 4 else 12
        t = tile % 4
        slot = tile % 3
        a(f"s_add_u32 s26, s34, {slot*6144}")
        a("s_mov_b32 m0, s26")
        a(f"s_add_u32 s25, s24, {t*6144}")
        for i in range(4):
            a(f"buffer_load_dwordx4 v{16+i}, s[{srd}:{srd+3}], s25 offen offset:{i*1024} nt lds")
        a(f"s_add_u32 s26, s34, {slot*6144+4096}")
        a("s_mov_b32 m0, s26")
        a(f"s_add_u32 s25, s24, {t*6144+4096}")
        for i in range(4, 6):
            a(f"buffer_load_dwordx4 v{16+i}, s[{srd}:{srd+3}], s25 offen offset:{(i-4)*1024} nt lds")

    for t in range(3):
        dma(t)
    a("v_mul_u32_u24 v15, 18432, v2")
    a("v_lshrrev_b32 v22, 1, v6")
    a("v_and_b32 v22, 3, v22")
    a("v_lshlrev_b32 v22, 1, v22")
    a("v_mul_u32_u24 v23, 24, v6")
    for m in range(6):
        a(f"v_add_u32 v30, {4*m}, v7")
        a("v_xor_b32 v30, v30, v22")
        a("v_add_u32 v30, v30, v23")
        a(f"v_lshl_add_u32 v{24+m}, v30, 4, v15")
    a("v_lshrrev_b32 v10, 2, v6")
    a("v_and_b32 v11, 3, v6")
    a("v_and_b32 v12, 1, v7")
    a("v_lshrrev_b32 v13, 1, v7")
    a("v_mul_u32_u24 v14, 6144, v13")
    a("v_add_u32 v14, v14, v15")
    a("v_lshl_add_u32 v14, v11, 3, v14")
    for half in range(2):
        a("v_lshlrev_b32 v30, 3, v12")
        a(f"v_add_u32 v30, {half*4}, v30")
        a("v_add_u32 v30, v30, v10")
        a("v_lshrrev_b32 v31, 1, v30")
        a("v_and_b32 v31, 3, v31")
        a("v_mul_u32_u24 v30, 384, v30")
        a("v_add_u32 v30, v30, v14")
        for e in range(4):
            a(f"v_xor_b32 v40, {e}, v31")
            a(f"v_lshl_add_u32 v{32+half*4+e}, v40, 5, v30")
    a(f"s_mov_b32 s28, {f32hex(SCALE)}")
    a(f"s_mov_b32 s29, {f32hex(LOG2E)}")
    a("v_lshlrev_b32 v41, 9, v2")
    a(f"v_add_u32 v41, {AUX}, v41")
    a("v_lshl_add_u32 v42, v1, 1, v41")
    a("v_lshl_add_u32 v43, v7, 4, v41")
    a("s_lshl_b32 s36, s20, 3")
    a("v_mov_b32 v44, s36")
    a("s_mov_b32 s58, 0")
    a.label("ka_poll")
    a("buffer_load_dwordx2 v[46:47], v44, s[60:63], 0 offen sc1")
    a("s_waitcnt vmcnt(0)")
    a("v_and_b32 v46, v46, v47")
    a("v_cmp_ne_u32 vcc, 0x01010101, v46")
    a("s_add_u32 s58, s58, 1")
    a("s_nop 1")
    a("s_cbranch_vccz ka_poll_ok")
    a("s_sleep 1")
    a("s_cmp_lt_u32 s58, 0x10000")
    a("s_cbranch_scc1 ka_poll")
    a.label("ka_poll_ok")
    for sp in range(8):
        for k in range(3):
            a(f"buffer_load_dword v{QR+sp*3+k}, v3, s[16:19], s30 offen offset:{k*256} sc1")
        if sp < 7:
            a("s_add_u32 s30, s30, 1536")
    a("s_waitcnt vmcnt(0)")
    for k in range(3):
        for sp in range(1, 8):
            a(f"v_add_f32 v{QR+k}, v{QR+k}, v{QR+sp*3+k}")
        a(f"v_cvt_pk_bf16_f32 v{QR+k}, v{QR+k}, v{QR+k}")
        a(f"ds_write_b16 v42, v{QR+k} offset:{k*128}")
    a("s_waitcnt lgkmcnt(0)")
    Q = 64
    for j in range(6):
        a(f"ds_read_b128 v[{Q+4*j}:{Q+4*j+3}], v43 offset:{j*64}")
    TB = 96
    D = 44
    for t in range(4):
        a("s_waitcnt vmcnt(12)")
        slot = t % 3
        for m in range(6):
            a(f"ds_read_b128 v[{TB+4*m}:{TB+4*m+3}], v{24+m} offset:{slot*6144}")
        a("s_waitcnt lgkmcnt(0)")
        dma(t + 3)
        for j in range(6):
            c = "0" if j == 0 else f"v[{D+4*t}:{D+4*t+3}]"
            a(f"v_mfma_f32_16x16x32_bf16 v[{D+4*t}:{D+4*t+3}], v[{Q+4*j}:{Q+4*j+3}], v[{TB+4*j}:{TB+4*j+3}], {c}")
        a("s_nop 3")
    a("s_nop 7")
    for tt in range(4):
        s_ = D + 4 * tt
        bf16r(a, s_, s_)
        a(f"v_mul_f32 v{s_}, s28, v{s_}")
        bf16r(a, s_, s_)
    a(f"v_max_f32 v11, v{D}, v{D+4}")
    a(f"v_max3_f32 v11, v11, v{D+8}, v{D+12}")
    for r in (1, 2, 4, 8):
        a("s_nop 1")
        a(f"v_max_f32_dpp v11, v11, v11 row_ror:{r} row_mask:0xf bank_mask:0xf")
    for tt in range(4):
        s_ = D + 4 * tt
        a(f"v_sub_f32 v{s_}, v{s_}, v11")
        a(f"v_mul_f32 v{s_}, s29, v{s_}")
        a(f"v_exp_f32 v{s_}, v{s_}")
    a("s_nop 0")
    a(f"v_add_f32 v12, v{D}, v{D+4}")
    a(f"v_add_f32 v12, v12, v{D+8}")
    a(f"v_add_f32 v12, v12, v{D+12}")
    a(f"v_mov_b32 v30, v{D}")
    for gg in range(1, 4):
        a(f"v_cmp_eq_u32 vcc, {gg}, v7")
        a("s_nop 1")
        a(f"v_cndmask_b32 v30, v30, v{D+4*gg}, vcc")
    a("v_cvt_pk_bf16_f32 v30, v30, v30")
    a("ds_write_b16 v42, v30 offset:384")
    for r in (1, 2, 4, 8):
        a("s_nop 1")
        a(f"v_add_f32_dpp v12, v12, v12 row_ror:{r} row_mask:0xf bank_mask:0xf")
    a("s_waitcnt lgkmcnt(0)")
    PA = 60
    a(f"ds_read_b128 v[{PA}:{PA+3}], v43 offset:384")
    a(f"ds_read_b128 v[64:67], v43 offset:{384+64}")
    O = 120
    for u in range(2):
        a(f"s_waitcnt vmcnt({6 if u == 0 else 0})")
        pa = PA if u == 0 else 64
        for q4 in range(3):
            for e in range(4):
                off = q4 * 128 + (6144 if u == 0 else 0)
                a(f"ds_read_b64_tr_b16 v[{TB+4*e}:{TB+4*e+1}], v{32+e} offset:{off}")
                a(f"ds_read_b64_tr_b16 v[{TB+4*e+2}:{TB+4*e+3}], v{36+e} offset:{off}")
            a("s_waitcnt lgkmcnt(0)")
            for e in range(4):
                dt = q4 * 4 + e
                c = "0" if u == 0 else f"v[{O+4*dt}:{O+4*dt+3}]"
                a(f"v_mfma_f32_16x16x32_bf16 v[{O+4*dt}:{O+4*dt+3}], v[{pa}:{pa+3}], v[{TB+4*e}:{TB+4*e+3}], {c}")
            a("s_nop 3")
        if u == 0:
            dma(7)
    a("s_nop 7")
    a("v_mul_u32_u24 v13, 18432, v2")
    a("v_lshl_add_u32 v14, v1, 2, v13")
    a("v_mov_b32 v18, v11")
    a("v_mov_b32 v19, v12")
    a("v_cmp_gt_u32 vcc, 16, v1")
    a("s_and_saveexec_b64 s[30:31], vcc")
    for dt in range(12):
        a(f"ds_write_b32 v14, v{O+4*dt} offset:{dt*64}")
    a("ds_write_b64 v13, v[18:19] offset:768")
    a("s_mov_b64 exec, s[30:31]")
    a("s_waitcnt lgkmcnt(0)")
    a("s_barrier")
    a("v_and_b32 v16, 255, v0")
    a("v_mov_b32 v15, s35")
    a("v_mov_b32 v18, 0")
    a("v_lshl_add_u32 v17, v16, 2, v18")
    for w in range(4):
        a(f"ds_read_b64 v[{20+2*w}:{21+2*w}], v18 offset:{w*18432+768}")
        a(f"ds_read_b32 v{30+w}, v17 offset:{w*18432}")
    a("s_waitcnt lgkmcnt(0)")
    a("v_max_f32 v34, v20, v22")
    a("v_max3_f32 v34, v34, v24, v26")
    for w in range(4):
        a(f"v_sub_f32 v{20+2*w}, v{20+2*w}, v34")
        a(f"v_mul_f32 v{20+2*w}, s29, v{20+2*w}")
        a(f"v_exp_f32 v{20+2*w}, v{20+2*w}")
    a("s_nop 0")
    a("v_mul_f32 v35, v20, v21")
    a("v_mul_f32 v36, v20, v30")
    for w in range(1, 4):
        a(f"v_fmac_f32 v35, v{20+2*w}, v{21+2*w}")
        a(f"v_fmac_f32 v36, v{20+2*w}, v{30+w}")
    a("v_cmp_eq_u32 vcc, 192, v16")
    a("s_nop 1")
    a("v_cndmask_b32 v36, v36, v34, vcc")
    a("v_cmp_eq_u32 vcc, 193, v16")
    a("s_nop 1")
    a("v_cndmask_b32 v36, v36, v35, vcc")
    a("v_cmp_gt_u32 vcc, 194, v16")
    a("s_and_saveexec_b64 s[30:31], vcc")
    a("s_cbranch_execz ka_done")
    a("s_lshl_b32 s22, s20, 3")
    a("s_add_u32 s22, s22, s21")
    a("s_lshl_b32 s22, s22, 10")
    a(f"s_add_u32 s22, s22, {PART_OFF}")
    a("v_lshlrev_b32 v17, 18, v15")
    a("v_lshl_add_u32 v17, v16, 2, v17")
    a("buffer_store_dword v36, v17, s[16:19], s22 offen")
    a.label("ka_done")
    a("s_endpgm")


P1_OFF = 1 << 20
H_OFF = P1_OFF + 40960
P2_OFF = H_OFF + 5120


def emit_poll(a, lab, first, n, target, vtmp, voff, dbg_srd):
    a(f"v_and_b32 v{voff}, {n-1}, v1")
    a(f"v_lshlrev_b32 v{voff}, 2, v{voff}")
    a("s_mov_b32 s58, 0")
    a.label(lab)
    a(f"buffer_load_dword v{vtmp}, v{voff}, s[{dbg_srd}:{dbg_srd+3}], 0 offen offset:{first*4} sc1")
    a("s_waitcnt vmcnt(0)")
    a(f"v_cmp_ne_u32 vcc, {target}, v{vtmp}")
    a("s_add_u32 s58, s58, 1")
    a("s_nop 1")
    a(f"s_cbranch_vccz {lab}_ok")
    a("s_sleep 2")
    a("s_cmp_lt_u32 s58, 0x200000")
    a(f"s_cbranch_scc1 {lab}")
    a.label(lab + "_ok")


def emit_signal(a, idx_sgpr_or_imm, dbg_srd, v0_, v1_):
    a(f"s_lshl_b32 s59, {idx_sgpr_or_imm}, 2")
    a(f"v_mov_b32 v{v0_}, s59")
    a(f"v_mov_b32 v{v1_}, 1")
    a("v_cmp_eq_u32 vcc, 0, v1")
    a("s_and_saveexec_b64 s[56:57], vcc")
    a(f"buffer_atomic_add v{v1_}, v{v0_}, s[{dbg_srd}:{dbg_srd+3}], 0 offen")
    a("s_mov_b64 exec, s[56:57]")

def role_c(a):
    a.label("kt_role_c")
    a("s_sub_u32 s2, s2, 160")
    load_srds(a, [("x", 8), ("wg", 12), ("ws", 16), ("wu", 20), ("wd", 24), ("dbg", 60)])
    prologue_ids(a)
    a("s_and_b32 s40, s2, 7")
    a("s_mul_i32 s40, s40, 12")
    a("s_lshr_b32 s41, s2, 3")
    a("s_add_u32 s40, s40, s41")
    a("v_and_b32 v6, 1, v2")
    a("v_mul_u32_u24 v7, 1280, v6")
    a("v_add_u32 v7, v7, v3")
    a("v_lshlrev_b32 v27, 1, v7")
    a("v_and_b32 v28, 1, v0")
    a("v_lshrrev_b32 v29, 1, v0")
    a("v_mul_u32_u24 v30, 3072, v29")
    a("v_lshl_add_u32 v30, v28, 4, v30")
    a("s_lshl_b32 s43, s40, 5")
    for i in range(5):
        a(f"buffer_load_dwordx4 v[{32+4*i}:{35+4*i}], v30, s[12:15], s43 offen nt")
        a(f"buffer_load_dwordx4 v[{52+4*i}:{55+4*i}], v30, s[20:23], s43 offen nt")
        if i < 4:
            a("s_add_u32 s43, s43, 393216")
    a("v_mul_u32_u24 v31, 205, v0")
    a("v_lshrrev_b32 v31, 14, v31")
    a("v_mul_u32_u24 v98, 80, v31")
    a("v_sub_u32 v98, v0, v98")
    a("v_mul_u32_u24 v99, 1280, v31")
    a("v_lshl_add_u32 v99, v98, 4, v99")
    a("s_mul_i32 s43, s40, 20480")
    for i in range(6):
        a(f"buffer_load_dwordx4 v[{72+4*i}:{75+4*i}], v99, s[24:27], s43 offen nt")
        if i < 5:
            a("s_add_u32 s43, s43, 3840")
    a("v_readfirstlane_b32 s48, v2")
    a("s_cmp_ge_u32 s48, 2")
    a("s_cbranch_scc1 kc_noln")
    a("s_mov_b32 s58, 0")
    for i in range(5):
        a(f"buffer_load_dword v{8+i}, v7, s[8:11], 0 offen offset:{i*256}")
    PP = 164
    a.label("kc_poll")
    a(f"s_mov_b32 s42, {P1_OFF}")
    for g in range(8):
        for i in range(5):
            a(f"buffer_load_dwordx2 v[{PP+g*10+2*i}:{PP+g*10+2*i+1}], v27, s[16:19], s42 offen offset:{i*512} sc1")
        if g < 7:
            a("s_add_u32 s42, s42, 5120")
    a("s_waitcnt vmcnt(0)")
    a(f"v_max_u32 v100, v{PP}, v{PP+1}")
    for r in range(PP + 2, PP + 80, 2):
        a(f"v_max3_u32 v100, v100, v{r}, v{r+1}")
    a("v_cmp_eq_u32 vcc, -1, v100")
    a("s_add_u32 s58, s58, 1")
    a("s_nop 1")
    a("s_cbranch_vccz kc_poll_ok")
    a("s_sleep 1")
    a("s_cmp_lt_u32 s58, 0x10000")
    a("s_cbranch_scc1 kc_poll")
    a.label("kc_poll_ok")
    vals = list(range(14, 24))
    for i in range(5):
        a(f"v_lshlrev_b32 v{14+2*i}, 16, v{8+i}")
        a(f"v_and_b32 v{15+2*i}, 0xffff0000, v{8+i}")
    for e in range(10):
        for g in range(1, 8):
            a(f"v_add_f32 v{PP+e}, v{PP+e}, v{PP+g*10+e}")
        bf16r(a, PP + e, PP + e)
        a(f"v_add_f32 v{14+e}, v{14+e}, v{PP+e}")
        bf16r(a, 14 + e, 14 + e)
    a("s_cmp_lg_u32 s2, 0")
    a("s_cbranch_scc1 kc_noh")
    a(f"s_mov_b32 s42, {H_OFF}")
    for i in range(5):
        a(f"buffer_store_dwordx2 v[{14+2*i}:{15+2*i}], v27, s[16:19], s42 offen offset:{i*512} sc1")
    a("s_waitcnt vmcnt(0)")
    a.label("kc_noh")
    emit_ln(a, vals, 3, 24, 25, 26, 5, sbase=52)
    a("v_lshlrev_b32 v24, 4, v1")
    a("v_lshl_add_u32 v24, v6, 2, v24")
    for i in range(5):
        a(f"ds_write_b32 v24, v{14+2*i} offset:{i*1024}")
        a(f"ds_write_b32 v24, v{15+2*i} offset:{i*1024+8}")
    a.label("kc_noln")
    a("s_waitcnt lgkmcnt(0)")
    a("s_barrier")
    a("v_lshlrev_b32 v24, 3, v29")
    for i in range(5):
        a(f"ds_read_b64 v[{120+2*i}:{121+2*i}], v24 offset:{i*1024}")
    A = 132
    for r in range(A, A + 32):
        a(f"v_mov_b32 v{r}, 0")
    a("s_waitcnt lgkmcnt(0)")
    for i in range(5):
        for m in range(2):
            a(f"s_waitcnt vmcnt({6 + (4-i)*2 + (1-m)})")
            for r in range(4):
                base = A + m * 16
                unpack_fma(a, (32 if m == 0 else 52) + 4 * i + r,
                           [(base + 2 * r, base + 2 * r + 1), (base + 8 + 2 * r, base + 9 + 2 * r)],
                           [120 + 2 * i, 121 + 2 * i])
    RED = 5120
    a("v_lshlrev_b32 v24, 8, v29")
    a("v_lshl_add_u32 v24, v28, 5, v24")
    for mb in range(4):
        a(f"ds_write_b128 v24, v[{A+8*mb}:{A+8*mb+3}] offset:{RED+mb*64}")
        a(f"ds_write_b128 v24, v[{A+8*mb+4}:{A+8*mb+7}] offset:{RED+mb*64+16}")
    a("s_waitcnt lgkmcnt(0)")
    a("s_barrier")
    a("v_lshlrev_b32 v24, 13, v2")
    a("v_add_u32 v24, v24, v3")
    for r in range(32):
        a(f"ds_read_b32 v{A+r}, v24 offset:{RED+r*256}")
    a("s_waitcnt lgkmcnt(0)")
    a(f"v_add_f32 v25, v{A}, v{A+1}")
    for r in range(2, 32):
        a(f"v_add_f32 v25, v25, v{A+r}")
    RED2 = RED + 32768
    a("v_lshlrev_b32 v24, 2, v0")
    a(f"ds_write_b32 v24, v25 offset:{RED2}")
    a("s_waitcnt lgkmcnt(0)")
    a("s_barrier")
    GL = RED2 + 1024
    a("v_cmp_gt_u32 vcc, 36, v0")
    a("s_and_saveexec_b64 s[44:45], vcc")
    a("s_cbranch_execz kc_skipg")
    a("v_lshlrev_b32 v24, 2, v0")
    for w in range(4):
        a(f"ds_read_b32 v{A+w}, v24 offset:{RED2+w*256}")
        a(f"ds_read_b32 v{A+4+w}, v24 offset:{RED2+w*256+128}")
    a("s_waitcnt lgkmcnt(0)")
    a(f"v_add_f32 v25, v{A}, v{A+1}")
    a(f"v_add_f32 v25, v25, v{A+2}")
    a(f"v_add_f32 v25, v25, v{A+3}")
    a(f"v_add_f32 v26, v{A+4}, v{A+5}")
    a(f"v_add_f32 v26, v26, v{A+6}")
    a(f"v_add_f32 v26, v26, v{A+7}")
    bf16r(a, 25, 25)
    bf16r(a, 26, 26)
    a("v_mul_f32 v4, v25, v25")
    a("v_mul_f32 v4, v4, v25")
    a(f"v_mov_b32 v5, {f32hex(0.044715)}")
    a("v_fma_f32 v4, v4, v5, v25")
    a(f"v_mul_f32 v4, {f32hex(2.0*math.sqrt(2.0/math.pi)*LOG2E)}, v4")
    a("v_exp_f32 v4, v4")
    a("s_nop 0")
    a("v_add_f32 v4, 1.0, v4")
    a("v_rcp_f32 v4, v4")
    a("s_nop 0")
    a("v_fma_f32 v4, v4, -2.0, 2.0")
    a("v_mul_f32 v4, 0.5, v4")
    a("v_mul_f32 v4, v4, v25")
    bf16r(a, 4, 4)
    a("v_mul_f32 v4, v4, v26")
    bf16r(a, 4, 4)
    a("v_cmp_gt_u32 vcc, 32, v0")
    a("s_nop 1")
    a("v_cndmask_b32 v4, 0, v4, vcc")
    a("v_and_b32 v5, 15, v0")
    a("v_lshlrev_b32 v5, 3, v5")
    a("v_lshrrev_b32 v24, 4, v0")
    a("v_lshl_add_u32 v5, v24, 2, v5")
    a("v_lshlrev_b32 v24, 2, v0")
    a("v_cndmask_b32 v5, v24, v5, vcc")
    a(f"ds_write_b32 v5, v4 offset:{GL}")
    a.label("kc_skipg")
    a("s_mov_b64 exec, s[44:45]")
    a("s_waitcnt lgkmcnt(0)")
    a("s_barrier")
    a("v_lshlrev_b32 v24, 3, v31")
    for i in range(6):
        a(f"ds_read_b64 v[{120+2*i}:{121+2*i}], v24 offset:{GL+i*24}")
    for r in range(A, A + 16):
        a(f"v_mov_b32 v{r}, 0")
    a("s_waitcnt lgkmcnt(0)")
    a("s_waitcnt vmcnt(0)")
    for i in range(6):
        for r in range(4):
            unpack_fma(a, 72 + 4 * i + r,
                       [(A + 2 * r, A + 2 * r + 1), (A + 8 + 2 * r, A + 9 + 2 * r)],
                       [120 + 2 * i, 121 + 2 * i])
    a("v_mul_u32_u24 v24, 5120, v31")
    a("v_lshl_add_u32 v24, v98, 5, v24")
    a("v_cmp_gt_u32 vcc, 240, v0")
    a("s_and_saveexec_b64 s[44:45], vcc")
    a(f"ds_write_b128 v24, v[{A}:{A+3}] offset:{RED}")
    a(f"ds_write_b128 v24, v[{A+4}:{A+7}] offset:{RED+16}")
    a(f"ds_write_b128 v24, v[{A+8}:{A+11}] offset:{RED+2560}")
    a(f"ds_write_b128 v24, v[{A+12}:{A+15}] offset:{RED+2560+16}")
    a("s_mov_b64 exec, s[44:45]")
    a("s_waitcnt lgkmcnt(0)")
    a("s_barrier")
    a("v_lshlrev_b32 v24, 2, v0")
    for k in range(5):
        for r in range(3):
            a(f"ds_read_b32 v{A+k*3+r}, v24 offset:{RED+r*5120+k*1024}")
    a("s_waitcnt lgkmcnt(0)")
    a("s_mul_i32 s42, s40, 5120")
    a(f"s_add_u32 s42, s42, {P2_OFF}")
    for k in range(5):
        a(f"v_add_f32 v{A+k*3}, v{A+k*3}, v{A+k*3+1}")
        a(f"v_add_f32 v{A+k*3}, v{A+k*3}, v{A+k*3+2}")
        if k == 4:
            a("s_add_u32 s42, s42, 4096")
        a(f"buffer_store_dword v{A+k*3}, v24, s[16:19], s42 offen offset:{(k%4)*1024} sc1")
    a("s_endpgm")


def role_d(a):
    a.label("kt_role_d")
    a("s_sub_u32 s2, s2, 256")
    load_srds(a, [("ws", 16), ("out", 28), ("dbg", 60)])
    prologue_ids(a)
    a("s_mov_b32 s58, 0")
    a("s_movk_i32 s20, 5120")
    a("v_mul_lo_u32 v6, v2, s20")
    a("v_mul_u32_u24 v6, 24, v6")
    a("v_add_u32 v6, v6, v3")
    a("s_lshl_b32 s21, s2, 8")
    a.label("kd_poll")
    a(f"s_add_u32 s22, s21, {P2_OFF}")
    for i in range(24):
        a(f"buffer_load_dword v{16+i}, v6, s[16:19], s22 offen sc1")
        if i < 23:
            a("s_add_u32 s22, s22, 5120")
    a(f"s_add_u32 s22, s21, {H_OFF}")
    a("buffer_load_dword v8, v3, s[16:19], s22 offen sc1")
    a("s_waitcnt vmcnt(0)")
    a("v_max_u32 v40, v8, v16")
    a("v_max_u32 v40, v40, v17")
    for r in range(18, 40, 2):
        a(f"v_max3_u32 v40, v40, v{r}, v{r+1}")
    a("v_cmp_eq_u32 vcc, -1, v40")
    a("s_add_u32 s58, s58, 1")
    a("s_nop 1")
    a("s_cbranch_vccz kd_poll_ok")
    a("s_sleep 1")
    a("s_cmp_lt_u32 s58, 0x10000")
    a("s_cbranch_scc1 kd_poll")
    a.label("kd_poll_ok")
    a("v_add_f32 v9, v16, v17")
    for i in range(2, 24):
        a(f"v_add_f32 v9, v9, v{16+i}")
    a("v_lshlrev_b32 v10, 2, v0")
    a("ds_write_b32 v10, v9")
    a("s_waitcnt lgkmcnt(0)")
    a("s_barrier")
    a("v_cmp_gt_u32 vcc, 64, v0")
    a("s_and_saveexec_b64 s[22:23], vcc")
    a("s_cbranch_execz kt_done")
    for w in range(4):
        a(f"ds_read_b32 v{16+w}, v3 offset:{w*256}")
    a("s_waitcnt lgkmcnt(0) vmcnt(0)")
    a("v_add_f32 v9, v16, v17")
    a("v_add_f32 v9, v9, v18")
    a("v_add_f32 v9, v9, v19")
    bf16r(a, 9, 9)
    a("v_add_f32 v9, v9, v8")
    a("v_cvt_pk_bf16_f32 v9, v9, v9")
    a("v_lshlrev_b32 v10, 1, v1")
    a("s_lshl_b32 s21, s2, 7")
    a("buffer_store_short v9, v10, s[28:31], s21 offen")
    a("s_endpgm")


def k_t(a):
    name = "kt_kernel"
    kernel_header(a, name)
    a("s_cmp_ge_u32 s2, 276")
    a("s_cbranch_scc1 kt_done")
    a("s_cmp_ge_u32 s2, 256")
    a("s_cbranch_scc1 kt_role_d")
    a("s_cmp_ge_u32 s2, 160")
    a("s_cbranch_scc1 kt_role_c")
    load_srds(a, [("wo", 12), ("ws", 16), ("dbg", 60)])
    prologue_ids(a)
    a("s_and_b32 s20, s2, 7")
    a("s_lshr_b32 s21, s2, 3")
    a("v_lshrrev_b32 v6, 5, v1")
    a("v_and_b32 v7, 31, v1")
    a("v_lshlrev_b32 v6, 18, v6")
    a("v_lshl_add_u32 v6, v7, 10, v6")
    a("s_lshl_b32 s22, s20, 15")
    a(f"s_add_u32 s22, s22, {PART_OFF}")
    a("buffer_load_dwordx2 v[8:9], v6, s[16:19], s22 offen offset:768")
    O = 64
    for k in range(3):
        a(f"v_add_u32 v10, {256*k}, v0")
        a("v_mul_u32_u24 v11, 21846, v10")
        a("v_lshrrev_b32 v11, 22, v11")
        a("v_mul_u32_u24 v12, 192, v11")
        a("v_sub_u32 v12, v10, v12")
        a(f"v_lshlrev_b32 v{13+k}, 13, v11")
        a(f"v_lshl_add_u32 v{13+k}, v12, 2, v{13+k}")
        a(f"v_lshlrev_b32 v{16+k}, 5, v11")
    a("s_add_u32 s23, s22, 4096")
    a("s_add_u32 s24, s22, 262144")
    a("s_add_u32 s25, s24, 4096")
    for k in range(3):
        for b in range(2):
            for sp in range(8):
                sreg = 22 + b * 2 + (sp >= 4)
                a(f"buffer_load_dword v{O+(k*2+b)*8+sp}, v{13+k}, s[16:19], s{sreg} offen offset:{(sp%4)*1024}")
    a("v_and_b32 v28, 3, v0")
    a("v_lshrrev_b32 v29, 2, v0")
    a("v_mul_u32_u24 v30, 1280, v29")
    a("v_lshl_add_u32 v30, v28, 4, v30")
    a("s_mul_i32 s26, s20, 983040")
    a("s_lshl_b32 s27, s21, 6")
    a("s_add_u32 s26, s26, s27")
    W = 112
    for i in range(12):
        a(f"buffer_load_dwordx4 v[{W+4*i}:{W+4*i+3}], v30, s[12:15], s26 offen nt")
        if i < 11:
            a("s_add_u32 s26, s26, 81920")
    a(f"s_mov_b32 s29, {f32hex(LOG2E)}")
    a("s_waitcnt vmcnt(60)")
    a("v_mov_b32 v10, v8")
    for r in (1, 2, 4):
        a("s_nop 1")
        a(f"v_max_f32_dpp v10, v10, v10 row_shr:{r} row_mask:0xf bank_mask:0xf" if False else
          f"ds_swizzle_b32 v11, v10 offset:{(r<<10)|0x1f}")
        a("s_waitcnt lgkmcnt(0)")
        a("v_max_f32 v10, v10, v11")
    a("v_sub_f32 v8, v8, v10")
    a("v_mul_f32 v8, s29, v8")
    a("v_exp_f32 v8, v8")
    a("s_nop 0")
    a("v_mul_f32 v9, v8, v9")
    for r in (1, 2, 4):
        a(f"ds_swizzle_b32 v11, v9 offset:{(r<<10)|0x1f}")
        a("s_waitcnt lgkmcnt(0)")
        a("v_add_f32 v9, v9, v11")
    a("v_rcp_f32 v9, v9")
    a("s_nop 0")
    a("v_mul_f32 v8, v8, v9")
    a("ds_write_b32 v3, v8")
    a("s_waitcnt lgkmcnt(0)")
    a("s_barrier")
    a("s_waitcnt vmcnt(12)")
    OL = 256
    for k in range(3):
        for b in range(2):
            a(f"ds_read_b128 v[20:23], v{16+k} offset:{b*128}")
            a(f"ds_read_b128 v[24:27], v{16+k} offset:{b*128+16}")
            a("s_waitcnt lgkmcnt(0)")
            base = O + (k * 2 + b) * 8
            a(f"v_mul_f32 v{8+b}, v20, v{base}")
            for sp in range(1, 8):
                a(f"v_fmac_f32 v{8+b}, v{20+sp}, v{base+sp}")
            bf16r(a, 8 + b, 8 + b)
        a("v_lshlrev_b32 v10, 3, v0")
        a(f"ds_write_b64 v10, v[8:9] offset:{OL+k*2048}")
    a("s_waitcnt lgkmcnt(0)")
    a("s_barrier")
    a("v_lshlrev_b32 v24, 3, v29")
    X = 64
    for i in range(12):
        a(f"ds_read_b64 v[{X+2*i}:{X+2*i+1}], v24 offset:{OL+i*512}")
    A = 96
    for r in range(A, A + 16):
        a(f"v_mov_b32 v{r}, 0")
    a("s_waitcnt lgkmcnt(0)")
    for i in range(12):
        a(f"s_waitcnt vmcnt({11-i})")
        for r in range(4):
            unpack_fma(a, W + 4 * i + r, [(A + 2 * r, A + 1 + 2 * r), (A + 8 + 2 * r, A + 9 + 2 * r)],
                       [X + 2 * i, X + 2 * i + 1])
    RED = 256 + 6144
    a("v_lshlrev_b32 v24, 8, v29")
    a("v_lshl_add_u32 v24, v28, 5, v24")
    a(f"ds_write_b128 v24, v[{A}:{A+3}] offset:{RED}")
    a(f"ds_write_b128 v24, v[{A+4}:{A+7}] offset:{RED+16}")
    a(f"ds_write_b128 v24, v[{A+8}:{A+11}] offset:{RED+128}")
    a(f"ds_write_b128 v24, v[{A+12}:{A+15}] offset:{RED+128+16}")
    a("s_waitcnt lgkmcnt(0)")
    a("s_barrier")
    a("v_lshlrev_b32 v24, 12, v2")
    a("v_add_u32 v24, v24, v3")
    for r in range(16):
        a(f"ds_read_b32 v{X+r}, v24 offset:{RED+r*256}")
    a("s_waitcnt lgkmcnt(0)")
    a(f"v_add_f32 v25, v{X}, v{X+1}")
    for r in range(2, 16):
        a(f"v_add_f32 v25, v25, v{X+r}")
    RED2 = RED + 16384
    a("v_lshlrev_b32 v24, 2, v0")
    a(f"ds_write_b32 v24, v25 offset:{RED2}")
    a("s_waitcnt lgkmcnt(0)")
    a("s_barrier")
    a("v_cmp_gt_u32 vcc, 64, v0")
    a("s_and_saveexec_b64 s[22:23], vcc")
    a("s_cbranch_execz kt_done")
    for w in range(4):
        a(f"ds_read_b32 v{X+w}, v3 offset:{RED2+w*256}")
    a("s_waitcnt lgkmcnt(0)")
    a(f"v_add_f32 v25, v{X}, v{X+1}")
    a(f"v_add_f32 v25, v25, v{X+2}")
    a(f"v_add_f32 v25, v25, v{X+3}")
    a("v_lshrrev_b32 v26, 5, v1")
    a("v_mul_u32_u24 v26, 2560, v26")
    a("v_and_b32 v27, 31, v1")
    a("v_lshl_add_u32 v26, v27, 2, v26")
    a("s_mul_i32 s27, s20, 5120")
    a("s_lshl_b32 s28, s21, 7")
    a("s_add_u32 s27, s27, s28")
    a(f"s_add_u32 s27, s27, {P1_OFF}")
    a("buffer_store_dword v25, v26, s[16:19], s27 offen sc1")
    a("s_endpgm")
    role_c(a)
    role_d(a)
    a.label("kt_done")
    a("s_endpgm")
    return name, 244


def main(out):
    a = Asm()
    hdr = open("cdna_kernels/" + NAME + ".s.ref").read().split("; Override launch geometry")[0]
    launches = [
        ("kqa_kernel", 768, 73728 + 2048),
        ("kt_kernel", 276, 5120 + 32768 + 1024 + 256),
    ]
    txt = hdr
    for k, g, l in launches:
        blk = 256
        txt += f"; @launch kernel={k} grid=({g},1,1) block=({blk},1,1) lds={l}\n"
    txt += '.amdgcn_target "amdgcn-amd-amdhsa--gfx950"\n.text\n'
    descs = []
    for fn in (k_q, k_t):
        n, v = fn(a)
        descs.append(kernel_desc(n, v))
    txt += a.text()
    txt += '.section .rodata,"a"\n.p2align 6\n'
    for d in descs:
        txt += ".p2align 6\n" + d
    open(out, "w").write(txt)


if __name__ == "__main__":
    main(sys.argv[1] if len(sys.argv) > 1 else "cdna_kernels/" + NAME + ".s")
```
